```python
import torch

def _softmax(x, axis=-1):
    return torch.softmax(x, dim=axis)
def _gelu(x):
    return torch.nn.functional.gelu(x, approximate="tanh")
def _silu(x):
    return torch.nn.functional.silu(x)
def _sigmoid(x):
    return torch.sigmoid(x)
def _layernorm(x, axis=-1, eps=1e-5):
    m = x.mean(dim=axis, keepdim=True)
    v = x.var(dim=axis, keepdim=True, unbiased=False)
    return (x - m) / torch.sqrt(v + eps)
def _scatter_add(tgt, idx, src, axis=0):
    return tgt.clone().index_add_(axis, idx, src)
def _segment_sum(src, seg, n):
    out = torch.zeros((n,) + src.shape[1:], dtype=src.dtype)
    return out.index_add_(0, seg, src)
def _pad(x, pw):
    flat = tuple(v for pair in reversed(pw) for v in pair)
    return torch.nn.functional.pad(x, flat)

kernel_name = 'parallel_sum__ssm_conv_s4d__moe_arch_mod__prompt'

def setup_inputs():

    _w = (lambda a: (lambda t: t.to(torch.bfloat16) if t.is_floating_point() else t)(torch.as_tensor(a)))
    def _A_setup():
        Bsz, L, D, N = 1, 2048, 512, 128
        return {
            "u": _w((lambda *s: torch.randn(*s, dtype=torch.bfloat16) * 0.05)(Bsz, L, D)),
            "log_A_real": _w((lambda *s: torch.randn(*s, dtype=torch.bfloat16) * 3.2)(D, N) * 0.5),
            "A_imag": _w((lambda *s: torch.randn(*s, dtype=torch.bfloat16) * 0.1)(D, N) * 3.14),
            "C_real": _w((lambda *s: torch.randn(*s, dtype=torch.bfloat16) * 0.8)(D, N) / N ** 0.5),
            "C_imag": _w((lambda *s: torch.randn(*s, dtype=torch.bfloat16) * 0.8)(D, N) / N ** 0.5),
            "log_dt": _w((lambda *s: torch.randn(*s, dtype=torch.bfloat16) * 0.1)(D) * 0.5 - 4.0),
            "D_skip": _w((lambda *s: torch.randn(*s, dtype=torch.bfloat16) * 0.1)(D)),
        }
    _A_in = _A_setup()

    def _B_setup():
        B, S, D, F, C = 1, 2048, 512, 1792, 2
        return {
            "x": _w((lambda *s: torch.randn(*s, dtype=torch.bfloat16) * 0.05)(B, S, D)),
            "w_r": _w((lambda *s: torch.randn(*s, dtype=torch.bfloat16) * 0.05)(D)),
            "w_gate": _w((lambda *s: torch.randn(*s, dtype=torch.bfloat16) * 0.05)(D, F)),
            "w_up": _w((lambda *s: torch.randn(*s, dtype=torch.bfloat16) * 0.05)(D, F)),
            "w_down": _w((lambda *s: torch.randn(*s, dtype=torch.bfloat16) * 0.05)(F, D)),
        }
    _B_in = _B_setup()

    return {
        "A_u": _A_in["u"],
        "A_log_A_real": _A_in["log_A_real"],
        "A_A_imag": _A_in["A_imag"],
        "A_C_real": _A_in["C_real"],
        "A_C_imag": _A_in["C_imag"],
        "A_log_dt": _A_in["log_dt"],
        "A_D_skip": _A_in["D_skip"],
        "B_x": _B_in["x"],
        "B_w_r": _B_in["w_r"],
        "B_w_gate": _B_in["w_gate"],
        "B_w_up": _B_in["w_up"],
        "B_w_down": _B_in["w_down"],
    }

def reference(A_u, A_log_A_real, A_A_imag, A_C_real, A_C_imag, A_log_dt, A_D_skip, B_x, B_w_r, B_w_gate, B_w_up, B_w_down):
    def _A_ref(u, log_A_real, A_imag, C_real, C_imag, log_dt, D_skip):
        L = u.shape[1]
        dt = torch.exp(log_dt)
        A = -torch.exp(log_A_real) + 1j * A_imag
        C = (C_real + 1j * C_imag) * dt[:, None]
        pos = (lambda x, dt: x.to(dt))(torch.arange(L), log_dt.dtype)
        P = torch.exp((A * dt[:, None])[:, :, None] * pos[None, None, :])
        K = 2.0 * torch.einsum("dn,dnl->dl", C, P).real
        L2 = 2 * L
        u_t = (lambda x, *d: x.permute(*d))(u, 0, 2, 1)
        Kf = (lambda x, *a, **k: torch.fft.rfft(x.float(), *a, **k))(K, L2)
        Uf = (lambda x, *a, **k: torch.fft.rfft(x.float(), *a, **k))(u_t, L2)
        y = (lambda x, *a, **k: torch.fft.irfft(x, *a, **k).to(torch.bfloat16))(Uf * Kf[None, :, :], L2)[:, :, :L]
        y = (lambda x, *d: x.permute(*d))(y, 0, 2, 1)
        return y + u * D_skip[None, None, :]

    def _B_ref(x, w_r, w_gate, w_up, w_down):
        B, S, D = x.shape
        C = 2
        r = x @ w_r
        idx = torch.argsort(-r, axis=-1)[:, :C]
        idx_e = (lambda x, n, axis: torch.repeat_interleave(x, n, dim=axis))(idx.reshape(B, C, 1), D, axis=2)
        x_sel = (lambda x, i, axis: torch.take_along_dim(x, i, dim=axis))(x, idx_e, axis=1)
        g = _silu(x_sel @ w_gate)
        u = x_sel @ w_up
        y = (g * u) @ w_down
        r_sel = _sigmoid((lambda x, i, axis: torch.take_along_dim(x, i, dim=axis))(r, idx, axis=1))
        y = y * r_sel.reshape(B, C, 1)
        b_off = (torch.arange(B) * S).reshape(B, 1)
        flat_idx = (idx + b_off).reshape(B * C)
        zero = (x * 0.0).reshape(B * S, D)
        upd = _scatter_add(zero, flat_idx, y.reshape(B * C, D), axis=0)
        return x + upd.reshape(B, S, D)

    x = A_u
    xn = _layernorm(x, axis=-1)
    return x + _A_ref(xn, A_log_A_real, A_A_imag, A_C_real, A_C_imag, A_log_dt, A_D_skip) + _B_ref(xn, B_w_r, B_w_gate, B_w_up, B_w_down)
```

```python
import re

TRANS = ("v_exp_f32","v_log_f32","v_rcp_f32","v_rsq_f32","v_sqrt_f32","v_sin_f32","v_cos_f32","v_rcp_iflag_f32")

def _expand(tok):
    tok = tok.strip()
    tok = re.sub(r"^-|^\|", "", tok).replace("|","")
    m = re.fullmatch(r"abs\((.*)\)", tok)
    if m: tok = m.group(1)
    m = re.fullmatch(r"([vsa])\[(\d+):(\d+)\]", tok)
    if m: return [f"{m.group(1)}{i}" for i in range(int(m.group(2)), int(m.group(3))+1)]
    if re.fullmatch(r"[vsa]\d+", tok): return [tok]
    if tok in ("vcc","vcc_lo","vcc_hi"): return ["vcc"]
    if tok in ("exec","exec_lo","exec_hi"): return ["exec"]
    if tok == "m0": return ["m0"]
    return []

class Ins:
    def __init__(self, text):
        self.text = text
        t = text.split(";")[0].strip()
        self.label = t.endswith(":")
        self.op = t.split()[0] if t and not self.label else ""
        self.directive = self.op.startswith(".")
        rest = t[len(self.op):].strip() if self.op else ""
        ops = []
        depth = 0; cur = ""
        for ch_ in rest:
            if ch_ == "[": depth += 1
            if ch_ == "]": depth -= 1
            if ch_ == "," and depth == 0: ops.append(cur.strip()); cur = ""
            else: cur += ch_
        if cur.strip(): ops.append(cur.strip())
        mods = ""
        if ops:
            parts = ops[-1].split()
            if parts:
                ops[-1] = parts[0]; mods = " ".join(parts[1:])
        self.ops = ops; self.mods = mods
        op = self.op
        self.w = []; self.r = []
        self.kind = "other"
        R = lambda xs: [r for x in xs for r in _expand(x)]
        if self.label or self.directive or not op: return
        if op.startswith("v_mfma"):
            self.kind = "mfma"; self.w = R(ops[:1]); self.r = R(ops[1:4]); self.srcC = R(ops[3:4]); self.srcAB = R(ops[1:3])
            self.passes = 8 if "32x32" in op else 4
        elif op.startswith("v_cmp"):
            self.kind = "valu"; self.w = R(ops[:1]); self.r = R(ops[1:])
            if op.startswith("v_cmpx"): self.w.append("exec")
        elif op.startswith("v_readlane") or op.startswith("v_readfirstlane"):
            self.kind = "valu"; self.w = R(ops[:1]); self.r = R(ops[1:])
        elif op.startswith("v_"):
            self.kind = "trans" if any(op.startswith(x) for x in TRANS) else "valu"
            if re.match(r"v_(add|sub|subrev|addc|subb)_co", op):
                self.w = R(ops[:2]); self.r = R(ops[2:])
            else:
                self.w = R(ops[:1]); self.r = R(ops[1:])
            if op.startswith(("v_fmac","v_pk_fmac","v_dot2c","v_writelane")): self.r += R(ops[:1])
            if op.startswith("v_permlane"): self.w = R(ops[:2]); self.r = R(ops[:2])
            if op.startswith("v_cndmask") and len(ops) == 3: self.r.append("vcc")
            if op.startswith(("v_cndmask_b32_e32",)) : self.r.append("vcc")
            if "row_" in mods or "quad_perm" in mods or "wave_" in mods:
                self.dpp = True
                if "bound_ctrl" not in mods: self.r += R(ops[:1])
        elif op.startswith("ds_"):
            self.kind = "ds"
            if op.startswith(("ds_read","ds_bpermute","ds_permute","ds_swizzle")) or "_rtn" in op:
                self.w = R(ops[:1]); self.r = R(ops[1:])
            else:
                self.r = R(ops)
        elif op.startswith(("buffer_","global_")):
            self.kind = "vmem"
            if "load" in op and " lds" not in " "+mods:
                self.w = R(ops[:1]); self.r = R(ops[1:])
            elif "atomic" in op and "sc0" in mods:
                self.w = R(ops[:1]); self.r = R(ops)
            else:
                self.r = R(ops)
            self.store = "store" in op
        elif op.startswith(("s_load","s_buffer_load","s_memtime","s_memrealtime")):
            self.kind = "smem"; self.w = R(ops[:1]); self.r = R(ops[1:])
        elif op.startswith(("s_cbranch","s_branch","s_endpgm","s_setpc","s_barrier","s_waitcnt","s_nop","s_sleep","s_setprio")):
            self.kind = "ctl"
        elif op.startswith("s_cmp") or op.startswith("s_bitcmp"):
            self.kind = "salu"; self.r = R(ops)
        elif op.startswith("s_"):
            self.kind = "salu"; self.w = R(ops[:1]); self.r = R(ops[1:])
            if "saveexec" in op: self.w.append("exec"); self.r.append("exec")
    def states(self):
        if self.label or self.directive or not self.op: return 0
        if self.op == "s_nop": return int(self.ops[0]) + 1
        return 1

def is_valu(i): return i.kind in ("valu","trans")

def need(p, c):
    n = 0
    pw, cr, cw = set(p.w), set(c.r), set(c.w)
    vw = {x for x in pw if x[0] == "v" and x != "vcc"}
    sw = {x for x in pw if x[0] == "s" or x == "vcc"}
    if is_valu(p):
        if vw & cr:
            if c.op.startswith(("v_readlane","v_readfirstlane")): n = max(n, 1)
            if getattr(c, "dpp", False): n = max(n, 2)
            if c.op.startswith("v_permlane"): n = max(n, 2)
            if c.kind == "mfma": n = max(n, 2)
            if p.kind == "trans" and c.kind != "trans": n = max(n, 1)
            if (("op_sel" in p.mods and not p.op.startswith("v_pk_")) or "sdwa" in p.op or "dst_sel" in p.mods) and is_valu(c): n = max(n, 1)
        if sw & cr:
            if c.kind == "vmem": n = max(n, 5)
            if is_valu(c):
                n = max(n, 2)
                if c.op.startswith(("v_readlane","v_writelane")) and len(c.ops) > 2 and set(_expand(c.ops[2])) & sw: n = max(n, 4)
        if "exec" in pw:
            if c.kind == "mfma": n = max(n, 4)
            if getattr(c, "dpp", False): n = max(n, 5)
            if c.op.startswith(("v_readlane","v_readfirstlane","v_permlane")): n = max(n, 4)
    if p.kind == "salu" and "m0" in pw and c.kind == "vmem" and "lds" in c.mods: n = max(n, 1)
    if p.kind == "vmem" and getattr(p, "store", False) and re.search(r"x[34]$", p.op):
        data = set(_expand(p.ops[0])) if p.op.startswith("buffer") else set(_expand(p.ops[1]))
        if data & cw: n = max(n, 2)
    if p.kind == "mfma":
        big = p.passes == 8
        if c.kind == "mfma":
            if pw & set(c.srcAB): n = max(n, 12 if big else 8)
            if pw & set(c.srcC) and (set(c.srcC) != pw or c.passes != p.passes): n = max(n, 10 if big else 6)
        else:
            if (pw & cr) or (pw & cw and c.kind in ("valu","trans","ds","vmem")): n = max(n, 12 if big else 8)
            if is_valu(c) and set(p.srcC) & cw: n = max(n, 7 if big else 3)
    return n

class Asm:
    def __init__(self):
        self.ins = []
    def __call__(self, text):
        for line in text.split("\n"):
            line = line.strip()
            if line: self.ins.append(Ins(line))
    def label(self, name): self.ins.append(Ins(name + ":"))
    def finalize(self, window=24):
        out = []
        for c in self.ins:
            if not (c.label or c.directive or not c.op):
                req = 0; dist = 0
                for p in reversed(out):
                    if dist >= window: break
                    k = need(p, c) if p.op and not p.label and not p.directive else 0
                    if k > dist: req = max(req, k - dist)
                    dist += p.states()
                while req > 0:
                    k = min(req, 16)
                    out.append(Ins(f"s_nop {k-1}")); req -= k
            out.append(c)
        self.out = out
        return "\n".join(("" if (i.label or i.directive) else "  ") + i.text for i in out) + "\n"
```

```python
import sys
from asmlib import Asm

KNAME = "parallel_sum__ssm_conv_s4d__moe_arch_mod__prompt_kernel"

WS_XB = 0
WS_SB = 4 << 20
WS_PB = (4 << 20) + 65536
WS_STAMP = 200 << 20
WS_DUMP = 16 << 20

CHS   = 34816
GHT   = 8704
GHROW = 544
def CB(c): return 16 * (272 * c + 4 * (c & 3) + 2 * (c >> 2))
L_U    = 69632
L_UCH  = 4608
L_KT   = 78848
L_KTCH = 1600
L_YP   = 82176
L_XT   = L_YP
L_STAT = 114944
L_MISC = 123136
L_MW   = 124160
L_MS   = 156928
LDS_BYTES = 160768
M_NONCE = L_MISC
M_STG   = L_MISC + 16
M_CAND  = L_MISC + 96
M_SEL   = L_MISC + 176
M_CNT   = L_MISC + 208
M_TOP   = L_MISC + 224
L_XS    = L_MS
L_PART  = L_MS + 2048
L_SEL   = 0
NPROD = 112

sX, sOUT, sWS, sLAR, sAIM, sCRE, sCIM, sWR, sWG, sWU, sWD, sDBG = [f"s[{i}:{i+3}]" for i in range(8, 56, 4)]
def srd_lo(s): return int(s[2:s.index(":")])
sW, sXCD, sY, sCP, sNON, sLDT, sDSK = "s56", "s57", "s58", "s59", "s60", "s61", "s62"

class Regs:
    def __init__(self, start=1, limit=256):
        self.n = start; self.limit = limit; self.hi = start
    def get(self, cnt=1, align=1):
        while self.n % align: self.n += 1
        b = self.n; self.n += cnt
        assert self.n <= self.limit, "out of VGPRs"
        self.hi = max(self.hi, self.n)
        return b
    def mark(self): return self.n
    def release(self, m): self.n = m

def v(i, n=1): return f"v{i}" if n == 1 else f"v[{i}:{i+n-1}]"

def gen(debug_dump=None, stamps=False, stop_after=None):
    a = Asm(); R = Regs()
    stamp_slots = []
    def stamp(name):
        if not stamps: return
        k = len(stamp_slots); stamp_slots.append(name)
        a(f"s_memrealtime s[{96}:{97}]\ns_waitcnt lgkmcnt(0)\nv_writelane_b32 {v(vST)}, s96, {k}")
    lane = R.get(); tid = 0
    vST = R.get()
    a("s_cmp_ge_u32 s2, 256")
    a("s_cbranch_scc1 L_end")
    a("s_load_dwordx2 s[8:9], s[0:1], 0")
    a("s_load_dwordx2 s[20:21], s[0:1], 8")
    a("s_load_dwordx2 s[24:25], s[0:1], 16")
    a("s_load_dwordx2 s[28:29], s[0:1], 24")
    a("s_load_dwordx2 s[32:33], s[0:1], 32")
    a("s_load_dwordx2 s[36:37], s[0:1], 64")
    a("s_memrealtime s[70:71]")
    t0 = R.get(); t1 = R.get(); t2 = R.get(); t3 = R.get()
    a(f"v_lshrrev_b32 {v(t0)}, 6, v0")
    a(f"v_and_b32 {v(lane)}, 63, v0")
    a(f"v_readfirstlane_b32 {sW}, {v(t0)}")
    a(f"s_and_b32 {sXCD}, s2, 7")
    a(f"s_lshr_b32 {sY}, s2, 3")
    for s, size in ((sX, 0x200000), (sLAR, 0x20000), (sAIM, 0x20000), (sCRE, 0x20000), (sCIM, 0x20000), (sWR, 1024)):
        b = srd_lo(s); a(f"s_mov_b32 s{b+2}, {size:#x}\ns_mov_b32 s{b+3}, 0x20000")
    vToff = R.get(); vL16 = R.get(); vPoff = R.get()
    a(f"v_lshrrev_b32 {v(t0)}, 2, {v(lane)}\nv_lshlrev_b32 {v(t0)}, 10, {v(t0)}")
    a(f"v_and_b32 {v(t1)}, 3, {v(lane)}\nv_lshl_or_b32 {v(vToff)}, {v(t1)}, 4, {v(t0)}")
    a(f"v_lshlrev_b32 {v(vL16)}, 4, {v(lane)}")
    a(f"v_lshlrev_b32 {v(vPoff)}, 1, {v(lane)}")
    a(f"s_lshr_b32 s63, {sW}, 1\ns_lshl_b32 s63, s63, 4\ns_lshl_b32 s64, {sY}, 6\ns_add_u32 s63, s63, s64\ns_lshl_b32 s63, s63, 10")
    a(f"s_lshl_b32 s64, {sXCD}, 7\ns_add_u32 s63, s63, s64\ns_and_b32 s65, {sW}, 1\ns_lshl_b32 s64, s65, 6\ns_add_u32 s63, s63, s64")
    a(f"s_lshl_b32 s64, s2, 3\ns_add_u32 s64, s64, {sW}\ns_lshl_b32 s64, s64, 10")
    a(f"s_lshl_b32 {sCP}, {sXCD}, 5\ns_add_u32 {sCP}, {sCP}, {sY}")
    a(f"s_bfe_u32 s66, {sW}, 0x10001\ns_lshl_b32 s67, {sCP}, 1\ns_add_u32 s67, s67, s66\ns_lshl_b32 s67, s67, 8\ns_lshl_b32 s68, s65, 7\ns_add_u32 s67, s67, s68")
    vXT = R.get(4, 2); vXR = R.get(4, 2); vWR = R.get(4, 2); vPar = R.get(4)
    a("s_waitcnt lgkmcnt(0)")
    a(f"buffer_load_dwordx4 {v(vXT,4)}, {v(vToff)}, {sX}, s63 offen")
    a(f"buffer_load_dwordx4 {v(vXR,4)}, {v(vL16)}, {sX}, s64 offen")
    a(f"buffer_load_ushort {v(vPar)}, {v(vPoff)}, {sLAR}, s67 offen")
    a(f"buffer_load_ushort {v(vPar+1)}, {v(vPoff)}, {sAIM}, s67 offen")
    a(f"buffer_load_ushort {v(vPar+2)}, {v(vPoff)}, {sCRE}, s67 offen")
    a(f"buffer_load_ushort {v(vPar+3)}, {v(vPoff)}, {sCIM}, s67 offen")
    a(f"buffer_load_dwordx4 {v(vWR,4)}, {v(vL16)}, {sWR}, 0 offen")
    a("s_load_dwordx2 s[16:17], s[0:1], 112")
    a("s_load_dwordx2 s[52:53], s[0:1], 104")
    a("s_load_dwordx4 s[4:7], s[0:1], 40")
    a("s_load_dwordx2 s[12:13], s[0:1], 96")
    a("s_load_dwordx2 s[40:41], s[0:1], 72")
    a("s_load_dwordx2 s[44:45], s[0:1], 80")
    a("s_load_dwordx2 s[48:49], s[0:1], 88")
    for s, size in ((sWS, 0x10000000), (sDBG, 256), (sOUT, 0x200000), (sWG, 1835008), (sWU, 1835008), (sWD, 1835008)):
        b = srd_lo(s); a(f"s_mov_b32 s{b+2}, {size:#x}\ns_mov_b32 s{b+3}, 0x20000")
    if stamps:
        a(f"v_mov_b32 {v(vST)}, 0\nv_writelane_b32 {v(vST)}, s70, 63")
    a("s_waitcnt lgkmcnt(0)")
    a(f"s_lshl_b32 s68, {sCP}, 2")
    a(f"s_load_dword {sLDT}, s[4:5], s68")
    a(f"s_load_dword {sDSK}, s[6:7], s68")
    vZero = R.get()
    a(f"v_mov_b32 {v(vZero)}, 0")
    a(f"s_or_b32 s68, s2, {sW}\ns_cmp_lg_u32 s68, 0\ns_cbranch_scc1 L_nononce")
    a(f"s_or_b32 s68, s70, 1\nv_mov_b32 {v(t0)}, s68")
    a(f"s_mov_b64 exec, 1\nbuffer_store_dword {v(t0)}, {v(vZero)}, {sDBG}, 0 offen sc1\ns_mov_b64 exec, -1")
    a.label("L_nononce")

    vXTw = R.get(); vXTr = R.get(); vXBs = R.get()
    a(f"s_mul_i32 s68, {sW}, 1280\ns_add_u32 s68, s68, {L_XT}")
    a(f"v_lshrrev_b32 {v(t0)}, 2, {v(lane)}\nv_mul_u32_u24 {v(t0)}, 80, {v(t0)}\nv_and_b32 {v(t1)}, 3, {v(lane)}\nv_lshlrev_b32 {v(t1)}, 4, {v(t1)}\nv_add3_u32 {v(vXTw)}, {v(t0)}, {v(t1)}, s68")
    a(f"v_and_b32 {v(t0)}, 7, {v(lane)}\nv_lshrrev_b32 {v(t1)}, 3, {v(lane)}")
    a(f"v_mul_u32_u24 {v(t2)}, 160, {v(t0)}\nv_lshl_add_u32 {v(t2)}, {v(t1)}, 2, {v(t2)}\nv_add_u32 {v(vXTr)}, s68, {v(t2)}")
    a(f"v_lshlrev_b32 {v(t1)}, 9, {v(t1)}\nv_lshl_or_b32 {v(vXBs)}, {v(t0)}, 4, {v(t1)}")
    a(f"s_lshl_b32 s72, {sXCD}, 5\ns_add_u32 s72, s72, {sY}\ns_lshl_b32 s72, s72, 14\ns_lshl_b32 s68, s65, 13\ns_add_u32 s72, s72, s68")
    a(f"s_lshr_b32 s68, {sW}, 1\ns_lshl_b32 s68, s68, 7\ns_add_u32 s72, s72, s68\ns_add_u32 s73, s72, 4096")
    vXBl = R.get(); vSBl = R.get()
    a(f"v_lshrrev_b32 {v(t0)}, 5, v0\nv_lshlrev_b32 {v(t0)}, 14, {v(t0)}\nv_and_b32 {v(t1)}, 31, v0\nv_lshl_or_b32 {v(vXBl)}, {v(t1)}, 4, {v(t0)}")
    a(f"v_lshlrev_b32 {v(vSBl)}, 4, v0")
    a(f"s_lshl_b32 s74, {sXCD}, 19\ns_lshl_b32 s68, {sY}, 9\ns_add_u32 s74, s74, s68\ns_add_u32 s75, s74, 0x40000")
    a(f"s_mov_b32 s76, {WS_SB}\ns_mov_b32 s77, {WS_SB + 8192}")
    vGHw = R.get()
    a(f"s_mul_i32 s68, s66, {CHS}\ns_lshl_b32 s69, s65, 8\ns_add_u32 s68, s68, s69\nv_lshl_add_u32 {v(vGHw)}, {v(lane)}, 2, s68")
    vKA = R.get(); vKB = R.get(); vKT0 = R.get(); vKT1 = R.get()
    vM = R.get(); vQ = R.get()
    a(f"v_and_b32 {v(vM)}, 15, {v(lane)}\nv_lshrrev_b32 {v(vQ)}, 4, {v(lane)}")
    a(f"v_mul_u32_u24 {v(t0)}, {GHROW}, {v(vM)}\nv_lshl_add_u32 {v(t0)}, {v(vQ)}, 4, {v(t0)}")
    a(f"s_lshr_b32 s69, {sW}, 1")
    a(f"s_mul_i32 s68, s65, {CHS}\ns_add_u32 s78, s69, 1\ns_mul_i32 s78, s78, {GHT}\ns_add_u32 s78, s78, s68")
    a(f"s_cmp_eq_u32 s69, 2\ns_cselect_b32 s79, s68, s78\ns_cselect_b32 s80, s78, s68")
    a(f"v_add_u32 {v(vKA)}, s79, {v(t0)}\nv_add_u32 {v(vKB)}, s80, {v(t0)}")
    a(f"v_and_b32 {v(t0)}, 1, {v(vQ)}\nv_lshlrev_b32 {v(t0)}, 2, {v(t0)}\nv_lshrrev_b32 {v(t1)}, 1, {v(vQ)}\nv_lshl_add_u32 {v(t0)}, {v(t1)}, 7, {v(t0)}\nv_lshl_add_u32 {v(t0)}, {v(vM)}, 3, {v(t0)}")
    a(f"v_lshlrev_b32 {v(t2)}, 6, {v(vQ)}\nv_add_u32 {v(t2)}, 256, {v(t2)}")
    a(f"v_cmp_gt_u32 vcc, 2, {v(vQ)}\nv_cndmask_b32 {v(t3)}, 1, 2, vcc\nv_lshlrev_b32 {v(t3)}, {v(t3)}, {v(vM)}\nv_add_u32 {v(t2)}, {v(t2)}, {v(t3)}")
    a(f"v_cndmask_b32 {v(t3)}, 32, 2, vcc")
    a(f"v_lshlrev_b32 {v(t1)}, 4, {v(vM)}\nv_lshl_add_u32 {v(t1)}, {v(vQ)}, 2, {v(t1)}\nv_add_u32 {v(t1)}, 512, {v(t1)}")
    a(f"s_cmp_eq_u32 s69, 1\ns_cselect_b64 vcc, -1, 0\nv_cndmask_b32 {v(t0)}, {v(t0)}, {v(t2)}, vcc\nv_cndmask_b32 {v(t3)}, 2, {v(t3)}, vcc")
    a(f"s_cmp_eq_u32 s69, 2\ns_cselect_b64 vcc, -1, 0\nv_cndmask_b32 {v(t0)}, {v(t0)}, {v(t1)}, vcc")
    a(f"s_mul_i32 s68, s65, {L_KTCH}\ns_add_u32 s68, s68, {L_KT}")
    a(f"v_lshl_add_u32 {v(vKT0)}, {v(t0)}, 1, s68\nv_lshl_add_u32 {v(vKT1)}, {v(t3)}, 1, {v(vKT0)}")
    vGA = R.get(16); vKCw = R.get()
    a(f"v_and_b32 {v(t0)}, 255, v0\nv_lshlrev_b32 {v(t1)}, 3, {v(t0)}\nv_sub_u32 {v(t1)}, 2047, {v(t1)}")
    a(f"s_lshr_b32 s68, {sW}, 2\ns_mul_i32 s69, s68, {CHS}\nv_lshl_add_u32 {v(vKCw)}, {v(t0)}, 4, s69")
    a(f"s_mul_i32 s68, s68, {L_KTCH}\ns_add_u32 s68, s68, {L_KT}\ns_mov_b32 s69, 0x4280")
    for tt in range(0, 16, 2):
        a(f"v_subrev_u32 {v(t2)}, {tt}, {v(t1)}\nv_subrev_u32 {v(t3)}, {tt+1}, {v(t1)}")
        a(f"v_cvt_f32_i32 {v(vGA+tt)}, {v(t2)}\nv_cvt_f32_i32 {v(vGA+tt+1)}, {v(t3)}")
        a(f"v_cvt_pk_bf16_f32 {v(t0)}, {v(vGA+tt)}, {v(vGA+tt+1)}")
        a(f"v_and_b32 {v(vGA+tt)}, 0xffff, {v(t0)}\nv_lshrrev_b32 {v(vGA+tt+1)}, 16, {v(t0)}")
        for k, lam in ((tt, t2), (tt+1, t3)):
            a(f"v_subrev_u32 {v(vGA+k)}, s69, {v(vGA+k)}\nv_cmp_gt_i32 vcc, 256, {v(lam)}\nv_cndmask_b32 {v(vGA+k)}, {v(vGA+k)}, {v(lam)}, vcc")
            if k >= 8:
                a(f"v_cmp_gt_i32 vcc, 0, {v(lam)}\nv_mov_b32 {v(t0)}, 768\nv_cndmask_b32 {v(vGA+k)}, {v(vGA+k)}, {v(t0)}, vcc")
            a(f"v_lshl_add_u32 {v(vGA+k)}, {v(vGA+k)}, 1, s68")
    a(f"v_lshrrev_b32 {v(t0)}, 7, v0\nv_mul_u32_u24 {v(t0)}, {L_UCH}, {v(t0)}\nv_and_b32 {v(t1)}, 127, v0\nv_lshl_add_u32 {v(t0)}, {v(t1)}, 2, {v(t0)}\nv_add_u32 {v(t0)}, {L_U}, {v(t0)}")
    a(f"s_cmp_ge_u32 {sW}, 4\ns_cbranch_scc1 L_nopad\nds_write_b32 {v(t0)}, {v(vZero)}")
    a(f"v_mov_b32 {v(t0)}, {L_KT + 1536}\nds_write_b32 {v(t0)}, {v(vZero)}\nds_write_b32 {v(t0)}, {v(vZero)} offset:{L_KTCH}\nv_mov_b32 {v(t0)}, {M_CNT}\nds_write_b32 {v(t0)}, {v(vZero)}")
    a.label("L_nopad")
    vTag = R.get(2, 2)
    a(f"s_cmp_lg_u32 {sW}, 0\ns_cbranch_scc1 L_npoll_done\ns_mov_b32 s68, 0")
    a.label("L_npoll")
    a(f"buffer_load_dword {v(t0)}, {v(vZero)}, {sDBG}, 0 offen sc1\ns_waitcnt vmcnt(0)\nv_readfirstlane_b32 {sNON}, {v(t0)}")
    a(f"s_add_u32 s68, s68, 1\ns_cmp_lg_u32 {sNON}, 0\ns_cbranch_scc1 L_npoll_ok\ns_cmp_lt_u32 s68, 200000\ns_cbranch_scc1 L_npoll")
    a.label("L_npoll_ok")
    a(f"v_mov_b32 {v(t0)}, {M_NONCE}\nv_mov_b32 {v(t1)}, {sNON}\nds_write_b32 {v(t0)}, {v(t1)}")
    a.label("L_npoll_done")
    stamp("p0b")
    vS0 = R.get(4, 2); vS1 = R.get(4, 2)
    a(f"s_waitcnt vmcnt(6)\nds_write_b128 {v(vXTw)}, {v(vXT,4)}")
    a(f"s_waitcnt lgkmcnt(0)\ns_barrier")
    a(f"v_mov_b32 {v(t0)}, {M_NONCE}\nds_read_b32 {v(vTag)}, {v(t0)}")
    a(f"ds_read2_b32 {v(vS0,2)}, {v(vXTr)} offset0:0 offset1:20\nds_read2_b32 {v(vS1,2)}, {v(vXTr)} offset0:8 offset1:28")
    a(f"s_waitcnt lgkmcnt(2)\nv_mov_b32 {v(vS0+2)}, {v(vTag)}\nv_mov_b32 {v(vS0+3)}, {v(vTag)}\nv_mov_b32 {v(vS1+2)}, {v(vTag)}\nv_mov_b32 {v(vS1+3)}, {v(vTag)}")
    a(f"v_readfirstlane_b32 {sNON}, {v(vTag)}")
    a(f"s_waitcnt lgkmcnt(0)")
    a(f"buffer_store_dwordx4 {v(vS0,4)}, {v(vXBs)}, {sWS}, s72 offen sc1\nbuffer_store_dwordx4 {v(vS1,4)}, {v(vXBs)}, {sWS}, s73 offen sc1")
    stamp("p1")
    mk = R.mark()
    f = R.get(8); d = R.get(8); s1 = R.get(); s2 = R.get(); wr = R.get(8); pk = R.get(4)
    a("s_waitcnt vmcnt(7)")
    for k in range(4):
        a(f"v_lshlrev_b32 {v(f+2*k)}, 16, {v(vXR+k)}\nv_and_b32 {v(f+2*k+1)}, 0xffff0000, {v(vXR+k)}")
    a(f"v_readfirstlane_b32 s68, {v(f)}")
    for k in range(8): a(f"v_subrev_f32 {v(d+k)}, s68, {v(f+k)}")
    a(f"v_add_f32 {v(s1)}, {v(d)}, {v(d+1)}\nv_mul_f32 {v(s2)}, {v(d)}, {v(d)}\nv_fmac_f32 {v(s2)}, {v(d+1)}, {v(d+1)}")
    for k in range(2, 8): a(f"v_add_f32 {v(s1)}, {v(s1)}, {v(d+k)}\nv_fmac_f32 {v(s2)}, {v(d+k)}, {v(d+k)}")
    def wave_reduce(regs, op="v_add_f32"):
        for sh in (1, 2, 4, 8):
            for r in regs: a(f"{op}_dpp {v(r)}, {v(r)}, {v(r)} row_shr:{sh} row_mask:0xf bank_mask:0xf bound_ctrl:0")
        for r in regs: a(f"{op}_dpp {v(r)}, {v(r)}, {v(r)} row_bcast:15 row_mask:0xa bank_mask:0xf")
        for r in regs: a(f"{op}_dpp {v(r)}, {v(r)}, {v(r)} row_bcast:31 row_mask:0xc bank_mask:0xf")
    wave_reduce([s1, s2])
    a(f"v_readlane_b32 s69, {v(s1)}, 63\nv_readlane_b32 s78, {v(s2)}, 63")
    a(f"s_mov_b32 s79, 0x3b000000")
    a(f"v_mov_b32 {v(s1)}, s69\nv_mov_b32 {v(s2)}, s78\nv_mul_f32 {v(s1)}, s79, {v(s1)}\nv_mul_f32 {v(s2)}, s79, {v(s2)}")
    a(f"v_fma_f32 {v(s2)}, -{v(s1)}, {v(s1)}, {v(s2)}\nv_max_f32 {v(s2)}, 0, {v(s2)}\nv_add_f32 {v(s1)}, s68, {v(s1)}")
    a(f"v_cvt_pk_bf16_f32 {v(t0)}, {v(s1)}, {v(s2)}")
    a(f"v_and_b32 {v(t1)}, 0xffff0000, {v(t0)}\nv_add_f32 {v(t1)}, 0x3727c5ac, {v(t1)}\nv_cvt_pk_bf16_f32 {v(t1)}, {v(t1)}, {v(t1)}")
    a(f"v_and_b32 {v(t1)}, 0xffff0000, {v(t1)}\nv_sqrt_f32 {v(t1)}, {v(t1)}\nv_cvt_pk_bf16_f32 {v(t1)}, {v(t1)}, {v(t1)}")
    a(f"v_and_b32 {v(t1)}, 0xffff0000, {v(t1)}")
    vMS = R.get(2, 2)
    a(f"v_and_b32 {v(t2)}, 0xffff, {v(t0)}\nv_or_b32 {v(vMS)}, {v(t2)}, {v(t1)}\nv_lshlrev_b32 {v(t0)}, 16, {v(t0)}\nv_rcp_f32 {v(t1)}, {v(t1)}")
    a("s_waitcnt vmcnt(2)")
    for k in range(4):
        a(f"v_lshlrev_b32 {v(wr+2*k)}, 16, {v(vWR+k)}\nv_and_b32 {v(wr+2*k+1)}, 0xffff0000, {v(vWR+k)}")
    for k in range(8): a(f"v_sub_f32 {v(d+k)}, {v(f+k)}, {v(t0)}")
    for k in range(4): a(f"v_cvt_pk_bf16_f32 {v(pk+k)}, {v(d+2*k)}, {v(d+2*k+1)}")
    for k in range(4): a(f"v_lshlrev_b32 {v(d+2*k)}, 16, {v(pk+k)}\nv_and_b32 {v(d+2*k+1)}, 0xffff0000, {v(pk+k)}")
    for k in range(8): a(f"v_mul_f32 {v(d+k)}, {v(d+k)}, {v(t1)}")
    for k in range(4): a(f"v_cvt_pk_bf16_f32 {v(pk+k)}, {v(d+2*k)}, {v(d+2*k+1)}")
    for k in range(4): a(f"v_lshlrev_b32 {v(d+2*k)}, 16, {v(pk+k)}\nv_and_b32 {v(d+2*k+1)}, 0xffff0000, {v(pk+k)}")
    a(f"v_mul_f32 {v(s1)}, {v(d)}, {v(wr)}")
    for k in range(1, 8): a(f"v_fmac_f32 {v(s1)}, {v(d+k)}, {v(wr+k)}")
    wave_reduce([s1])
    a(f"v_readlane_b32 s69, {v(s1)}, 63")
    a(f"v_mov_b32 {v(s1)}, s69\nv_cvt_pk_bf16_f32 {v(vMS+1)}, {v(s1)}, {v(s1)}\nv_and_b32 {v(vMS+1)}, 0xffff, {v(vMS+1)}")
    a(f"s_lshl_b32 s68, {sW}, 3\ns_add_u32 s68, s68, {M_STG}\nv_mov_b32 {v(t0)}, s68")
    a(f"s_mov_b64 exec, 1\nds_write_b64 {v(t0)}, {v(vMS,2)}\ns_mov_b64 exec, -1")
    a("s_waitcnt lgkmcnt(0)\ns_barrier")
    a(f"s_cmp_lg_u32 {sW}, 0\ns_cbranch_scc1 L_nostat")
    su = R.get(4, 2)
    a(f"s_mov_b64 exec, 15\nv_lshlrev_b32 {v(t0)}, 4, {v(lane)}\nv_add_u32 {v(t2)}, {M_STG}, {v(t0)}\nds_read_b128 {v(su,4)}, {v(t2)}")
    a(f"s_lshl_b32 s68, s2, 6\ns_add_u32 s68, s68, {WS_SB}")
    a(f"s_waitcnt lgkmcnt(0)\nv_lshl_or_b32 {v(su+1)}, {v(su+3)}, 16, {v(su+1)}\nv_mov_b32 {v(su+3)}, {v(vTag)}")
    a(f"v_mov_b32 {v(t1)}, {v(su+1)}\nv_mov_b32 {v(su+1)}, {v(su+2)}\nv_mov_b32 {v(su+2)}, {v(t1)}")
    a(f"buffer_store_dwordx4 {v(su,4)}, {v(t0)}, {sWS}, s68 offen sc1\ns_mov_b64 exec, -1")
    a.label("L_nostat")
    R.release(mk)
    stamp("p2")
    vWD = R.get(16, 2)
    a(f"s_cmp_lt_u32 {sW}, 4\ns_cbranch_scc1 L_nowts\ns_cmp_ge_u32 {sY}, 14\ns_cbranch_scc1 L_nowts")
    a(f"s_mul_i32 s81, {sXCD}, 14\ns_add_u32 s81, s81, {sY}")
    a(f"s_sub_u32 s82, {sW}, 4")
    a(f"v_lshrrev_b32 {v(t0)}, 1, {v(lane)}\nv_mul_u32_u24 {v(t0)}, 3584, {v(t0)}\nv_and_b32 {v(t1)}, 1, {v(lane)}\nv_lshl_add_u32 {v(t0)}, {v(t1)}, 4, {v(t0)}")
    a(f"s_mul_i32 s68, s82, {128*3584}\ns_lshl_b32 s69, s81, 5\ns_add_u32 s68, s68, s69\ns_lshl_b32 s69, s82, 12\ns_add_u32 s69, s69, {L_MW}")
    for i in range(4):
        for mat, srd in enumerate((sWG, sWU)):
            a(f"s_add_u32 m0, s69, {mat*16384 + i*1024}\ns_add_u32 s78, s68, {i*32*3584}\nbuffer_load_dwordx4 {v(t0)}, {srd}, s78 offen lds")
    a(f"v_and_b32 {v(t1)}, 255, v0\nv_lshlrev_b32 {v(t1)}, 2, {v(t1)}\ns_lshl_b32 s68, s81, 14")
    for i in range(16):
        if i % 4 == 0 and i: a(f"s_add_u32 s68, s68, 4096")
        a(f"buffer_load_dword {v(vWD+i)}, {v(t1)}, {sWD}, s68 offen offset:{(i % 4)*1024}")
    a.label("L_nowts")

    mk = R.mark()
    LOG2E = "0x3fb8aa3b"; INV2PI = "0x3e22f983"
    zr = R.get(); zi = R.get(); cr = R.get(); ci = R.get(); tq = R.get(4)
    rot = [0]
    def tmp():
        rot[0] = (rot[0] + 1) & 3
        return tq + rot[0]
    def cx(): return R.get(2)
    a(f"s_lshl_b32 s68, {sLDT}, 16\ns_and_b32 s69, {sLDT}, 0xffff0000\ns_cmp_eq_u32 s66, 0\ns_cselect_b32 s68, s68, s69")
    a(f"v_mov_b32 {v(t0)}, s68\nv_mul_f32 {v(t0)}, {LOG2E}, {v(t0)}\nv_exp_f32 {v(t0)}, {v(t0)}")
    a(f"v_lshlrev_b32 {v(t1)}, 16, {v(vPar)}\nv_mul_f32 {v(t1)}, {LOG2E}, {v(t1)}\nv_exp_f32 {v(t1)}, {v(t1)}")
    a(f"v_cvt_pk_bf16_f32 {v(t0)}, {v(t1)}, {v(t0)}")
    a(f"v_lshlrev_b32 {v(t1)}, 16, {v(t0)}\nv_and_b32 {v(t0)}, 0xffff0000, {v(t0)}")
    a(f"v_mul_f32 {v(zr)}, {v(t1)}, {v(t0)}\nv_mul_f32 {v(zr)}, 0xbfb8aa3b, {v(zr)}")
    a(f"v_lshlrev_b32 {v(t1)}, 16, {v(vPar+1)}\nv_mul_f32 {v(zi)}, {v(t1)}, {v(t0)}\nv_mul_f32 {v(zi)}, {INV2PI}, {v(zi)}")
    a(f"v_add_f32 {v(t0)}, {v(t0)}, {v(t0)}")
    a(f"v_lshlrev_b32 {v(t1)}, 16, {v(vPar+2)}\nv_mul_f32 {v(cr)}, {v(t1)}, {v(t0)}\nv_lshlrev_b32 {v(t1)}, 16, {v(vPar+3)}\nv_mul_f32 {v(ci)}, {v(t1)}, {v(t0)}")
    C = cr
    assert ci == cr + 1
    def cexp(tval):
        o = cx(); e = tmp(); g = tmp()
        import struct
        lit = lambda x: hex(struct.unpack("<I", struct.pack("<f", float(x)))[0])
        a(f"v_mul_f32 {v(e)}, {lit(tval)}, {v(zr)}\nv_mul_f32 {v(g)}, {lit(tval)}, {v(zi)}\nv_exp_f32 {v(e)}, {v(e)}\nv_fract_f32 {v(g)}, {v(g)}")
        a(f"v_cos_f32 {v(o)}, {v(g)}\nv_sin_f32 {v(o+1)}, {v(g)}\nv_mul_f32 {v(o)}, {v(o)}, {v(e)}\nv_mul_f32 {v(o+1)}, {v(o+1)}, {v(e)}")
        return o
    def cmul(x, y, o=None):
        o = cx() if o is None else o
        a(f"v_mul_f32 {v(o)}, {v(x)}, {v(y)}\nv_mul_f32 {v(o+1)}, {v(x)}, {v(y+1)}")
        a(f"v_fma_f32 {v(o)}, -{v(x+1)}, {v(y+1)}, {v(o)}\nv_fmac_f32 {v(o+1)}, {v(x+1)}, {v(y)}")
        return o
    def csq(x):
        o = cx(); e = tmp()
        a(f"v_mul_f32 {v(e)}, {v(x+1)}, {v(x+1)}\nv_mul_f32 {v(o+1)}, {v(x)}, {v(x+1)}\nv_fma_f32 {v(o)}, {v(x)}, {v(x)}, -{v(e)}\nv_add_f32 {v(o+1)}, {v(o+1)}, {v(o+1)}")
        return o
    def put(val, T, row, conj=False):
        e = tmp()
        a(f"v_cvt_pk_bf16_f32 {v(e)}, {v(val)}, {'-' if conj else ''}{v(val+1)}\nds_write_b32 {v(vGHw)}, {v(e)} offset:{T*GHT + row*GHROW}")
    scr = [R.get(2), R.get(2), R.get(2)]
    sc = [0]
    def rows(P, Q, T, row0, conj=False):
        put(P, T, row0, conj)
        for k, q_ in enumerate(Q):
            sc[0] = (sc[0] + 1) % 3
            put(cmul(P, q_, scr[sc[0]]), T, row0 + 1 + k, conj)
    a(f"s_cmp_ge_u32 {sW}, 4\ns_cbranch_scc1 L_pathY")
    mk2 = R.mark()
    E1 = cexp(1); E64 = cexp(64)
    E2 = csq(E1); E128 = csq(E64); E4 = csq(E2); E8 = csq(E4); E16 = csq(E8); E32 = csq(E16)
    E3 = cmul(E1, E2); E24 = cmul(E8, E16); E96 = cmul(E64, E32)
    P1 = cmul(C, E4); P2 = cmul(C, E128); P3 = cmul(P2, E4)
    for k, P in enumerate((C, P1, P2, P3)): rows(P, (E1, E2, E3), 1, 4*k)
    e = tmp(); a(f"v_mov_b32 {v(e)}, 0x3f80\nds_write_b32 {v(vGHw)}, {v(e)} offset:0")
    for k, q_ in enumerate((E8, E16, E24)): put(q_, 0, 1 + k, True)
    for k, P in enumerate((E32, E64, E96)): rows(P, (E8, E16, E24), 0, 4*(k+1), True)
    a("s_branch L_kgen_done")
    R.release(mk2)
    a.label("L_pathY")
    E2 = cexp(2); E128 = cexp(128)
    E4 = csq(E2); E256 = csq(E128); E512 = csq(E256); E1024 = csq(E512); E2048 = csq(E1024)
    E6 = cmul(E2, E4); E132 = cmul(E4, E128); E384 = cmul(E128, E256)
    P0 = cmul(C, E256); P1 = cmul(P0, E128); P2 = cmul(C, E512); P3 = cmul(P2, E256)
    rows(P0, (E2, E4, E6), 2, 0); rows(P1, (E2, E4, E6), 2, 4)
    rows(P2, (E4, E128, E132), 2, 8); rows(P3, (E4, E128, E132), 2, 12)
    P0 = cmul(C, E1024, P0); P1 = cmul(P0, E512, P1); P2 = cmul(C, E2048, P2)
    rows(P0, (E128, E256, E384), 3, 0); rows(P1, (E128, E256, E384), 3, 4)
    put(P2, 3, 8)
    a.label("L_kgen_done")
    R.release(mk)
    stamp("kgen")
    vXA = R.get(4, 2); vXB_ = R.get(4, 2); vSA = R.get(4, 2); vSB_ = R.get(4, 2)
    def xchg_loads():
        a(f"buffer_load_dwordx4 {v(vXA,4)}, {v(vXBl)}, {sWS}, s74 offen sc1\nbuffer_load_dwordx4 {v(vXB_,4)}, {v(vXBl)}, {sWS}, s75 offen sc1")
        a(f"buffer_load_dwordx4 {v(vSA,4)}, {v(vSBl)}, {sWS}, s76 offen sc1\nbuffer_load_dwordx4 {v(vSB_,4)}, {v(vSBl)}, {sWS}, s77 offen sc1")
    a("s_waitcnt lgkmcnt(0)\ns_barrier")
    xchg_loads()
    mk = R.mark()
    acc = R.get(4, 4); fa = R.get(32, 4); fb = R.get(32, 4)
    a(f"s_cmp_ge_u32 {sW}, 6\ns_cbranch_scc1 L_nokt")
    rd = lambda s_: a(f"ds_read_b128 {v(fa+4*s_,4)}, {v(vKA)} offset:{64*s_}\nds_read_b128 {v(fb+4*s_,4)}, {v(vKB)} offset:{64*s_}")
    for s_ in range(6): rd(s_)
    for k in range(4): a(f"v_mov_b32 {v(acc+k)}, 0")
    for s_ in range(8):
        out_ = 2*min(5, 7 - s_) if s_ < 2 else 2*(7 - s_)
        a(f"s_waitcnt lgkmcnt({out_})\nv_mfma_f32_16x16x32_bf16 {v(acc,4)}, {v(fa+4*s_,4)}, {v(fb+4*s_,4)}, {v(acc,4)}")
        if s_ + 6 < 8: rd(s_ + 6)
    a(f"v_cvt_pk_bf16_f32 {v(t0)}, {v(acc)}, {v(acc+1)}\nv_cvt_pk_bf16_f32 {v(t1)}, {v(acc+2)}, {v(acc+3)}")
    a(f"ds_write_b32 {v(vKT0)}, {v(t0)}\nds_write_b32 {v(vKT1)}, {v(t1)}")
    a.label("L_nokt")
    R.release(mk)
    a("s_waitcnt lgkmcnt(0)\ns_barrier")
    stamp("ktab")
    mk = R.mark()
    g = R.get(16); dd = R.get(8, 2); ee = R.get(6, 2); ss = R.get(6, 2); ff = R.get(6, 2); zz = R.get(4, 2)
    for k in range(16):
        a(f"ds_read_u16 {v(g+k)}, {v(vGA+k)}")
        if k == 11: a("s_waitcnt lgkmcnt(8)")
    for k in range(4): a(f"v_mov_b32 {v(zz+k)}, 0")
    a("s_waitcnt lgkmcnt(0)")
    for p in range(8): a(f"v_lshl_or_b32 {v(dd+p)}, {v(g+2*p+1)}, 16, {v(g+2*p)}")
    for p in range(6): a(f"v_lshl_or_b32 {v(ee+p)}, {v(g+2*p+3)}, 16, {v(g+2*p+2)}")
    for p in range(6): a(f"v_lshl_or_b32 {v(ss+p)}, {v(g+2*p+2)}, 16, {v(g+2*p+1)}")
    for p in range(6): a(f"v_lshl_or_b32 {v(ff+p)}, {v(g+2*p+4)}, 16, {v(g+2*p+3)}")
    src = {7: dd, 5: ee, 3: dd+2, 1: ee+2, 6: ss, 4: ff, 2: ss+2, 0: ff+2}
    for c in (7, 3, 5, 1, 6, 2, 4, 0):
        a(f"ds_write_b128 {v(vKCw)}, {v(src[c],4)} offset:{CB(c)}")
    a(f"s_and_b32 s68, {sW}, 3\ns_cmp_lg_u32 s68, 0\ns_cbranch_scc1 L_nozc")
    a(f"v_and_b32 {v(t0)}, 3, {v(lane)}\nv_lshlrev_b32 {v(t0)}, 2, {v(t0)}\nv_bfe_u32 {v(t1)}, {v(lane)}, 2, 1\nv_lshl_add_u32 {v(t0)}, {v(t1)}, 1, {v(t0)}")
    a(f"v_and_b32 {v(t1)}, 7, {v(lane)}\nv_mul_u32_u24 {v(t1)}, 272, {v(t1)}\nv_add_u32 {v(t0)}, {v(t0)}, {v(t1)}\nv_lshlrev_b32 {v(t0)}, 4, {v(t0)}")
    a(f"s_lshr_b32 s68, {sW}, 2\ns_mul_i32 s68, s68, {CHS}\ns_add_u32 s68, s68, 4096\nv_add_u32 {v(t0)}, s68, {v(t0)}")
    a(f"s_mov_b64 exec, 255\nds_write_b128 {v(t0)}, {v(zz,4)}\ns_mov_b64 exec, -1")
    a.label("L_nozc")
    R.release(mk)
    stamp("kcopy")
    a("s_mov_b32 s68, 0")
    a.label("L_xpoll")
    a("s_waitcnt vmcnt(0)")
    a(f"v_cmp_ne_u32 vcc, {sNON}, {v(vXA+3)}\nv_cmp_ne_u32 s[78:79], {sNON}, {v(vXB_+3)}\ns_or_b64 vcc, vcc, s[78:79]")
    a(f"v_cmp_ne_u32 s[78:79], {sNON}, {v(vSA+3)}\ns_or_b64 vcc, vcc, s[78:79]\nv_cmp_ne_u32 s[78:79], {sNON}, {v(vSB_+3)}\ns_or_b64 vcc, vcc, s[78:79]")
    a(f"s_cmp_eq_u64 vcc, 0\ns_cbranch_scc1 L_xok\ns_add_u32 s68, s68, 1\ns_cmp_ge_u32 s68, 100000\ns_cbranch_scc1 L_xok")
    xchg_loads()
    a("s_branch L_xpoll")
    a.label("L_xok")
    stamp("xvalid")
    vUw = R.get(); vU = R.get(4)
    vKey = R.get(2, 2)
    mk = R.mark()
    xf = R.get(8); mm = R.get(4); rs = R.get(4); pk = R.get(4); key = R.get(4)
    a(f"v_lshlrev_b32 {v(vUw)}, 2, v0\nv_add_u32 {v(vUw)}, {L_U + 512}, {v(vUw)}")
    toks = [(vXA, vSA, 0), (vXA+1, vSA+1, 1), (vXB_, vSB_, 2), (vXB_+1, vSB_+1, 3)]
    for x_, s_, k in toks:
        a(f"v_lshlrev_b32 {v(mm+k)}, 16, {v(s_)}\nv_and_b32 {v(rs+k)}, 0xffff0000, {v(s_)}\nv_rcp_f32 {v(rs+k)}, {v(rs+k)}")
        a(f"v_lshlrev_b32 {v(xf+2*k)}, 16, {v(x_)}\nv_and_b32 {v(xf+2*k+1)}, 0xffff0000, {v(x_)}")
    for x_, s_, k in toks:
        a(f"v_sub_f32 {v(xf+2*k)}, {v(xf+2*k)}, {v(mm+k)}\nv_sub_f32 {v(xf+2*k+1)}, {v(xf+2*k+1)}, {v(mm+k)}\nv_cvt_pk_bf16_f32 {v(pk+k)}, {v(xf+2*k)}, {v(xf+2*k+1)}")
    for x_, s_, k in toks:
        a(f"v_lshlrev_b32 {v(xf+2*k)}, 16, {v(pk+k)}\nv_and_b32 {v(xf+2*k+1)}, 0xffff0000, {v(pk+k)}")
        a(f"v_mul_f32 {v(xf+2*k)}, {v(xf+2*k)}, {v(rs+k)}\nv_mul_f32 {v(xf+2*k+1)}, {v(xf+2*k+1)}, {v(rs+k)}")
    for u_ in range(2):
        for ch in range(2):
            a(f"v_cvt_pk_bf16_f32 {v(vU+2*u_+ch)}, {v(xf+4*u_+ch)}, {v(xf+4*u_+2+ch)}")
            a(f"ds_write_b32 {v(vUw)}, {v(vU+2*u_+ch)} offset:{ch*L_UCH + u_*2048}")
    a(f"v_lshlrev_b32 {v(t0)}, 3, v0\nv_add_u32 {v(t0)}, {L_STAT}, {v(t0)}\nds_write_b64 {v(t0)}, {v(vSA,2)}\nds_write_b64 {v(t0)}, {v(vSB_,2)} offset:4096")
    a(f"v_lshlrev_b32 {v(t1)}, 1, v0\nv_sub_u32 {v(t1)}, 0xffff, {v(t1)}")
    for k, (src_, hi) in enumerate(((vSA+2, 0), (vSA+2, 1), (vSB_+2, 0), (vSB_+2, 1))):
        if hi: a(f"v_and_b32 {v(t2)}, 0xffff0000, {v(src_)}")
        else:  a(f"v_lshlrev_b32 {v(t2)}, 16, {v(src_)}")
        a(f"v_ashrrev_i32 {v(t3)}, 31, {v(t2)}\nv_or_b32 {v(t3)}, 0x80000000, {v(t3)}\nv_xor_b32 {v(t2)}, {v(t2)}, {v(t3)}\nv_and_b32 {v(t2)}, 0xffff0000, {v(t2)}")
        a(f"v_subrev_u32 {v(t3)}, {(k & 1) + 1024*(k >> 1)}, {v(t1)}\nv_or_b32 {v(key+k)}, {v(t2)}, {v(t3)}")
    k1, k2 = vKey, vKey + 1
    a(f"v_max_u32 {v(k1)}, {v(key)}, {v(key+1)}\nv_min_u32 {v(k2)}, {v(key)}, {v(key+1)}")
    a(f"v_max_u32 {v(t2)}, {v(key+2)}, {v(key+3)}\nv_min_u32 {v(t3)}, {v(key+2)}, {v(key+3)}")
    def merge(b1, b2):
        a(f"v_max_u32 {v(k2)}, {v(k2)}, {v(b2)}\nv_med3_u32 {v(k2)}, {v(k1)}, {v(b1)}, {v(k2)}\nv_max_u32 {v(k1)}, {v(k1)}, {v(b1)}")
    merge(t2, t3)
    for ctl in ("row_shr:1", "row_shr:2", "row_shr:4", "row_shr:8"):
        a(f"v_mov_b32_dpp {v(t2)}, {v(k1)} {ctl} row_mask:0xf bank_mask:0xf bound_ctrl:0\nv_mov_b32_dpp {v(t3)}, {v(k2)} {ctl} row_mask:0xf bank_mask:0xf bound_ctrl:0")
        merge(t2, t3)
    for ctl in ("row_bcast:15 row_mask:0xa", "row_bcast:31 row_mask:0xc"):
        a(f"v_mov_b32 {v(t2)}, 0\nv_mov_b32 {v(t3)}, 0")
        a(f"v_mov_b32_dpp {v(t2)}, {v(k1)} {ctl} bank_mask:0xf\nv_mov_b32_dpp {v(t3)}, {v(k2)} {ctl} bank_mask:0xf")
        merge(t2, t3)
    a(f"s_lshl_b32 s68, {sW}, 3\ns_add_u32 s68, s68, {M_CAND}\nv_mov_b32 {v(t0)}, s68")
    a(f"s_mov_b32 exec_lo, 0\ns_mov_b32 exec_hi, 0x80000000\nds_write_b64 {v(t0)}, {v(k1,2) if k1 % 2 == 0 else v(k1,2)}\ns_mov_b64 exec, -1")
    R.release(mk)
    vA = R.get(); vB = R.get(); vYw = R.get(); vYr = R.get(); vO = R.get()
    a(f"s_and_b32 s68, {sW}, 1\ns_bfe_u32 s69, {sW}, 0x10001")
    a(f"v_and_b32 {v(t0)}, 7, {v(vM)}\nv_mul_u32_u24 {v(t1)}, 272, {v(t0)}\nv_and_b32 {v(t2)}, 3, {v(vM)}\nv_lshl_add_u32 {v(t1)}, {v(t2)}, 2, {v(t1)}")
    a(f"v_bfe_u32 {v(t2)}, {v(vM)}, 2, 1\nv_lshl_add_u32 {v(t1)}, {v(t2)}, 1, {v(t1)}\nv_add_u32 {v(t1)}, {v(t1)}, {v(vQ)}\nv_lshrrev_b32 {v(t2)}, 3, {v(vM)}\nv_sub_u32 {v(t1)}, {v(t1)}, {v(t2)}")
    a(f"s_mul_i32 s78, s69, {CHS}\ns_lshl_b32 s79, s68, 8\ns_sub_u32 s78, s78, s79\ns_add_u32 s78, s78, {464 - 192}\nv_lshl_add_u32 {v(vA)}, {v(t1)}, 4, s78")
    a(f"s_mul_i32 s78, s69, {L_UCH}\ns_sub_u32 s78, s78, s79\ns_add_u32 s78, s78, {L_U + 480 - 192}")
    a(f"v_lshlrev_b32 {v(t1)}, 5, {v(vM)}\nv_lshl_add_u32 {v(t1)}, {v(vQ)}, 4, {v(t1)}\nv_add_u32 {v(vB)}, s78, {v(t1)}")
    a(f"v_lshrrev_b32 {v(t1)}, 1, {v(vM)}\nv_add_u32 {v(t1)}, {v(t1)}, {v(vQ)}\nv_and_b32 {v(t1)}, 3, {v(t1)}\nv_lshlrev_b32 {v(t1)}, 4, {v(t1)}\nv_lshl_add_u32 {v(t1)}, {v(vM)}, 6, {v(t1)}")
    a(f"s_and_b32 s78, {sW}, 3\ns_lshl_b32 s78, s78, 13\ns_add_u32 s78, s78, {L_YP}\nv_add_u32 {v(vYw)}, s78, {v(t1)}")
    a(f"v_bfe_u32 {v(t0)}, v0, 3, 4\nv_bfe_u32 {v(t1)}, v0, 1, 2\nv_lshrrev_b32 {v(t2)}, 1, {v(t0)}\nv_add_u32 {v(t1)}, {v(t1)}, {v(t2)}\nv_and_b32 {v(t1)}, 3, {v(t1)}")
    a(f"v_lshlrev_b32 {v(t1)}, 4, {v(t1)}\nv_lshl_add_u32 {v(t1)}, {v(t0)}, 6, {v(t1)}\nv_lshrrev_b32 {v(t2)}, 7, v0\nv_lshl_add_u32 {v(t1)}, {v(t2)}, 10, {v(t1)}")
    a(f"v_and_b32 {v(t2)}, 1, v0\nv_lshl_add_u32 {v(t1)}, {v(t2)}, 3, {v(t1)}\nv_add_u32 {v(vYr)}, {L_YP}, {v(t1)}")
    a(f"v_lshlrev_b32 {v(vO)}, 11, v0")
    a("s_waitcnt lgkmcnt(0)\ns_barrier")
    stamp("ufill")
    a(f"s_cmp_ge_u32 {sW}, 4\ns_cbranch_scc1 L_helper")
    mk = R.mark()
    NA = 6
    acc = R.get(32, 4); bufB = [R.get(32, 4), R.get(32, 4)]; bufA = R.get(4*NA, 4)
    for k in range(32): a(f"v_mov_b32 {v(acc+k)}, 0")
    ops = []; reads = []
    for ki in range(4):
        for dl in range(7, -1, -1):
            for i in range(0, 8 - dl):
                ops.append((i + dl, ("A", ki, dl), ("B", ki, i)))
    first = {}; last = {}
    for t_, (_, ka, kb) in enumerate(ops):
        for k_ in (ka, kb):
            first.setdefault(k_, t_); last[k_] = t_
    order = sorted(first, key=lambda k_: (first[k_], k_[0] == "B"))
    reg = {}; prev = {}
    na = 0; occA = [None]*NA
    for k_ in order:
        if k_[0] == "A":
            slot = na % NA; na += 1
            reg[k_] = bufA + 4*slot; prev[k_] = occA[slot]; occA[slot] = k_
        else:
            reg[k_] = bufB[k_[1] & 1] + 4*k_[2]
            prev[k_] = ("B", k_[1]-2, k_[2]) if k_[1] >= 2 else None
    def addr(k_):
        if k_[0] == "A": return f"{v(vA)} offset:{512*(7-k_[2]) + 64*(3-k_[1])}"
        return f"{v(vB)} offset:{512*k_[2] + 64*(3-k_[1])}"
    issued = []; nxt = 0; waited = -1
    def issue(k_):
        a(f"ds_read_b128 {v(reg[k_],4)}, {addr(k_)}"); issued.append(k_)
    LOOK = 12
    for t_, (j, ka, kb) in enumerate(ops):
        budget = 2
        while nxt < len(order):
            k_ = order[nxt]
            must = first[k_] <= t_
            free = prev[k_] is None or last[prev[k_]] < t_
            if must or (free and budget > 0 and first[k_] <= t_ + LOOK and len(issued) - 1 - waited < 13):
                assert free
                issue(k_); nxt += 1; budget -= 1
            else: break
        need_ = max(issued.index(ka), issued.index(kb))
        if need_ > waited:
            a(f"s_waitcnt lgkmcnt({len(issued) - 1 - need_})"); waited = need_
        a(f"v_mfma_f32_16x16x32_bf16 {v(acc+4*j,4)}, {v(reg[ka],4)}, {v(reg[kb],4)}, {v(acc+4*j,4)}")
    stamp("conv")
    for i in range(8): a(f"ds_write_b128 {v(vYw)}, {v(acc+4*i,4)} offset:{1024*i}")
    R.release(mk)
    a("s_branch L_epi")
    a.label("L_helper")
    mk = R.mark()
    c1 = R.get(2, 2); xs = R.get(2, 2); msr = R.get(); xf4 = R.get(4)
    a(f"v_lshlrev_b32 {v(t0)}, 3, {v(lane)}\nv_add_u32 {v(t0)}, {M_CAND}, {v(t0)}\nv_mov_b32 {v(c1)}, 0\nv_mov_b32 {v(c1+1)}, 0")
    a(f"s_mov_b64 exec, 255\nds_read_b64 {v(c1,2)}, {v(t0)}\ns_mov_b64 exec, -1\ns_waitcnt lgkmcnt(0)")
    k1, k2 = c1, c1 + 1
    for ctl in ("row_shr:1", "row_shr:2", "row_shr:4"):
        a(f"v_mov_b32_dpp {v(t2)}, {v(k1)} {ctl} row_mask:0xf bank_mask:0xf bound_ctrl:0\nv_mov_b32_dpp {v(t3)}, {v(k2)} {ctl} row_mask:0xf bank_mask:0xf bound_ctrl:0")
        a(f"v_max_u32 {v(k2)}, {v(k2)}, {v(t3)}\nv_med3_u32 {v(k2)}, {v(k1)}, {v(t2)}, {v(k2)}\nv_max_u32 {v(k1)}, {v(k1)}, {v(t2)}")
    a(f"v_readlane_b32 s84, {v(k1)}, 7\nv_readlane_b32 s85, {v(k2)}, 7")
    a("s_and_b32 s86, s84, 0xffff\ns_sub_u32 s86, 0xffff, s86\ns_and_b32 s87, s85, 0xffff\ns_sub_u32 s87, 0xffff, s87")
    a(f"s_cmp_lg_u32 {sW}, 4\ns_cbranch_scc1 L_notop")
    tp = R.get(4, 2)
    a(f"v_mov_b32 {v(tp)}, s86\nv_mov_b32 {v(tp+1)}, s87\nv_mov_b32 {v(tp+2)}, s84\nv_mov_b32 {v(tp+3)}, s85\nv_mov_b32 {v(t0)}, {M_TOP}")
    a(f"s_mov_b64 exec, 1\nds_write_b128 {v(t0)}, {v(tp,4)}\ns_mov_b64 exec, -1")
    a.label("L_notop")
    a(f"s_cmp_ge_u32 {sY}, 14\ns_cbranch_scc1 L_epi")
    a(f"v_lshrrev_b32 {v(t0)}, 5, {v(lane)}\nv_cmp_eq_u32 vcc, 0, {v(t0)}\nv_mov_b32 {v(t1)}, s87\nv_mov_b32 {v(t2)}, s86\nv_cndmask_b32 {v(t1)}, {v(t1)}, {v(t2)}, vcc")
    a(f"v_and_b32 {v(t2)}, 31, {v(lane)}\nv_lshlrev_b32 {v(t2)}, 3, {v(t2)}\nv_lshl_add_u32 {v(t3)}, {v(t1)}, 10, {v(t2)}\ns_lshl_b32 s68, s82, 8")
    a(f"buffer_load_dwordx2 {v(xs,2)}, {v(t3)}, {sX}, s68 offen")
    a(f"v_lshlrev_b32 {v(t1)}, 2, {v(t1)}\nv_add_u32 {v(t1)}, {L_STAT}, {v(t1)}\nds_read_b32 {v(msr)}, {v(t1)}")
    vXSw = R.get(); vXSr = R.get(); vTR = R.get()
    a(f"s_lshl_b32 s69, s82, 9\ns_add_u32 s69, s69, {L_XS}")
    a(f"v_lshl_add_u32 {v(vXSw)}, {v(t0)}, 8, {v(t2)}\nv_add_u32 {v(vXSw)}, s69, {v(vXSw)}")
    a(f"v_and_b32 {v(t0)}, 1, {v(vM)}\nv_lshlrev_b32 {v(t0)}, 8, {v(t0)}\nv_lshl_add_u32 {v(t0)}, {v(vQ)}, 3, {v(t0)}\nv_add_u32 {v(vXSr)}, s69, {v(t0)}")
    a(f"s_lshl_b32 s69, s82, 12\ns_add_u32 s69, s69, {L_MW}\nv_lshl_add_u32 {v(vTR)}, {v(lane)}, 3, s69")
    wp = R.get(16)
    a("s_mov_b32 s78, 0x05040100\ns_mov_b32 s79, 0x07060302")
    for p in range(8):
        a(f"v_perm_b32 {v(wp+2*p)}, {v(vWD+2*p+1)}, {v(vWD+2*p)}, s78\nv_perm_b32 {v(wp+2*p+1)}, {v(vWD+2*p+1)}, {v(vWD+2*p)}, s79")
    fbg = R.get(16, 2); fbu = R.get(16, 2); fa_ = R.get(16, 2); aG = R.get(4, 4); aU = R.get(4, 4)
    for s_ in range(4):
        for h in range(2):
            a(f"ds_read_b64_tr_b16 {v(fbg+4*s_+2*h,2)}, {v(vTR)} offset:{1024*s_ + 512*h}")
    for k in range(4): a(f"v_mov_b32 {v(aG+k)}, 0\nv_mov_b32 {v(aU+k)}, 0")
    a("s_waitcnt lgkmcnt(4)")
    for s_ in range(4):
        for h in range(2):
            a(f"ds_read_b64_tr_b16 {v(fbu+4*s_+2*h,2)}, {v(vTR)} offset:{16384 + 1024*s_ + 512*h}")
    a(f"s_waitcnt vmcnt(0) lgkmcnt(8)")
    a(f"v_lshlrev_b32 {v(t0)}, 16, {v(msr)}\nv_and_b32 {v(t1)}, 0xffff0000, {v(msr)}\nv_rcp_f32 {v(t1)}, {v(t1)}")
    for k in range(2): a(f"v_lshlrev_b32 {v(xf4+2*k)}, 16, {v(xs+k)}\nv_and_b32 {v(xf4+2*k+1)}, 0xffff0000, {v(xs+k)}")
    for k in range(4): a(f"v_sub_f32 {v(xf4+k)}, {v(xf4+k)}, {v(t0)}")
    for k in range(2): a(f"v_cvt_pk_bf16_f32 {v(xs+k)}, {v(xf4+2*k)}, {v(xf4+2*k+1)}")
    for k in range(2): a(f"v_lshlrev_b32 {v(xf4+2*k)}, 16, {v(xs+k)}\nv_and_b32 {v(xf4+2*k+1)}, 0xffff0000, {v(xs+k)}")
    for k in range(4): a(f"v_mul_f32 {v(xf4+k)}, {v(xf4+k)}, {v(t1)}")
    for k in range(2): a(f"v_cvt_pk_bf16_f32 {v(xs+k)}, {v(xf4+2*k)}, {v(xf4+2*k+1)}")
    a(f"ds_write_b64 {v(vXSw)}, {v(xs,2)}")
    for s_ in range(4):
        for h in range(2):
            a(f"ds_read_b64 {v(fa_+4*s_+2*h,2)}, {v(vXSr)} offset:{64*s_ + 32*h}")
            if s_ == 1 and h == 1: a("s_waitcnt lgkmcnt(4)")
    for s_ in range(4):
        a(f"s_waitcnt lgkmcnt({6 - 2*s_ if s_ >= 2 else 4})" if False else "")
    a("s_waitcnt lgkmcnt(0)")
    for s_ in range(4):
        a(f"v_mfma_f32_16x16x32_bf16 {v(aG,4)}, {v(fa_+4*s_,4)}, {v(fbg+4*s_,4)}, {v(aG,4)}")
        a(f"v_mfma_f32_16x16x32_bf16 {v(aU,4)}, {v(fa_+4*s_,4)}, {v(fbu+4*s_,4)}, {v(aU,4)}")
    a(f"v_cmp_eq_u32 vcc, 0, {v(vQ)}\nv_cndmask_b32 {v(t0)}, {v(aG+1)}, {v(aG)}, vcc")
    a(f"v_cmp_eq_u32 vcc, 2, {v(vQ)}\nv_cndmask_b32 {v(t1)}, {v(aU+1)}, {v(aU)}, vcc")
    a(f"v_cmp_gt_u32 vcc, 2, {v(vQ)}\nv_cndmask_b32 {v(t0)}, {v(t1)}, {v(t0)}, vcc")
    a(f"s_lshl_b32 s69, s82, 8\ns_add_u32 s69, s69, {L_PART}\nv_lshl_add_u32 {v(t1)}, {v(lane)}, 2, s69\nds_write_b32 {v(t1)}, {v(t0)}")
    a(f"v_mov_b32 {v(t2)}, {M_CNT}\nv_mov_b32 {v(t3)}, 1\ns_mov_b64 exec, 1\nds_add_u32 {v(t2)}, {v(t3)}\ns_mov_b64 exec, -1\ns_mov_b32 s69, 0")
    a.label("L_hspin")
    a(f"ds_read_b32 {v(t3)}, {v(t2)}\ns_waitcnt lgkmcnt(0)\nv_readfirstlane_b32 s68, {v(t3)}\ns_add_u32 s69, s69, 1\ns_cmp_ge_u32 s68, 4\ns_cbranch_scc1 L_hgo\ns_cmp_lt_u32 s69, 1000000\ns_cbranch_scc1 L_hspin")
    a.label("L_hgo")
    pr = R.get(4)
    a(f"v_lshlrev_b32 {v(t1)}, 2, {v(lane)}\nv_add_u32 {v(t1)}, {L_PART}, {v(t1)}")
    for j in range(4): a(f"ds_read_b32 {v(pr+j)}, {v(t1)} offset:{256*j}")
    a(f"s_waitcnt lgkmcnt(0)\nv_add_f32 {v(pr)}, {v(pr)}, {v(pr+1)}\nv_add_f32 {v(pr+2)}, {v(pr+2)}, {v(pr+3)}\nv_add_f32 {v(pr)}, {v(pr)}, {v(pr+2)}")
    a(f"v_cvt_pk_bf16_f32 {v(pr)}, {v(pr)}, {v(pr)}\nv_and_b32 {v(pr)}, 0xffff0000, {v(pr)}\nv_mov_b32 {v(pr+1)}, {v(pr)}")
    a(f"v_permlane32_swap_b32 {v(pr)}, {v(pr+1)}")
    a(f"v_mul_f32 {v(t0)}, 0xbfb8aa3b, {v(pr)}\nv_exp_f32 {v(t0)}, {v(t0)}\nv_add_f32 {v(t0)}, 1.0, {v(t0)}\nv_rcp_f32 {v(t0)}, {v(t0)}\nv_mul_f32 {v(t0)}, {v(t0)}, {v(pr)}")
    a(f"v_cvt_pk_bf16_f32 {v(t0)}, {v(t0)}, {v(t0)}\nv_and_b32 {v(t0)}, 0xffff0000, {v(t0)}\nv_mul_f32 {v(t0)}, {v(t0)}, {v(pr+1)}\nv_cvt_pk_bf16_f32 {v(t0)}, {v(t0)}, {v(t0)}\nv_and_b32 {v(t0)}, 0xffff, {v(t0)}")
    a(f"v_mov_b32_dpp {v(t1)}, {v(t0)} quad_perm:[1,0,3,2] row_mask:0xf bank_mask:0xf bound_ctrl:0\nv_lshl_or_b32 {v(t0)}, {v(t1)}, 16, {v(t0)}")
    pa = R.get(8, 2)
    first_ = True
    for p in range(8):
        for tok in range(2):
            sr = 88 + tok
            a(f"v_readlane_b32 s{sr}, {v(t0)}, {16*tok + 2*p}")
        for tok in range(2):
            for ch in range(2):
                dst = pa + (0, 1, 2, 4)[2*tok + ch]
                if p == 0: a(f"v_mov_b32 {v(dst)}, 0")
                a(f"v_dot2_f32_bf16 {v(dst)}, s{88+tok}, {v(wp+2*p+ch)}, {v(dst)}")
    a(f"v_mov_b32 {v(pa+3)}, {sNON}\nv_mov_b32 {v(pa+5)}, 0\nv_mov_b32 {v(pa+6)}, 0\nv_mov_b32 {v(pa+7)}, {sNON}")
    a(f"v_and_b32 {v(t1)}, 255, v0\nv_lshlrev_b32 {v(t1)}, 5, {v(t1)}\ns_lshl_b32 s68, s81, 13\ns_add_u32 s68, s68, {WS_PB}")
    a(f"buffer_store_dwordx4 {v(pa,4)}, {v(t1)}, {sWS}, s68 offen sc1\nbuffer_store_dwordx4 {v(pa+4,4)}, {v(t1)}, {sWS}, s68 offen offset:16 sc1")
    R.release(mk)
    stamp("moe")
    a.label("L_epi")
    a("s_waitcnt lgkmcnt(0)\ns_barrier")
    stamp("ybar")
    mk = R.mark()
    yp = R.get(16, 2); yb = R.get(8); xn = R.get(8); xx = R.get(8); dk = R.get(2); o = R.get(4)
    for u_ in range(2):
        for ch in range(2):
            for h in range(2):
                a(f"ds_read_b64 {v(yp + 8*u_ + 4*ch + 2*h, 2)}, {v(vYr)} offset:{8192*(2*ch+h) + 4096*u_}")
    tp = R.get(4, 2); t1p = R.get(4); se = R.get(2, 2); vOj = R.get(4)
    a(f"v_mov_b32 {v(t0)}, {M_TOP}\nds_read_b128 {v(tp,4)}, {v(t0)}")
    a(f"s_lshl_b32 s68, {sDSK}, 16\ns_and_b32 s69, {sDSK}, 0xffff0000")
    for u_ in range(2):
        for ch in range(2):
            k = 4*u_ + 2*ch
            a(f"v_lshlrev_b32 {v(xn+k)}, 16, {v(vU+2*u_+ch)}\nv_and_b32 {v(xn+k+1)}, 0xffff0000, {v(vU+2*u_+ch)}")
        xs = (vXA, vXB_)[u_]
        for tok in range(2):
            a(f"v_lshlrev_b32 {v(xx+4*u_+tok)}, 16, {v(xs+tok)}\nv_and_b32 {v(xx+4*u_+2+tok)}, 0xffff0000, {v(xs+tok)}")
    a("s_waitcnt lgkmcnt(0)")
    for u_ in range(2):
        for ch in range(2):
            k = 4*u_ + 2*ch; y0 = yp + 8*u_ + 4*ch
            a(f"v_add_f32 {v(y0)}, {v(y0)}, {v(y0+2)}\nv_add_f32 {v(y0+1)}, {v(y0+1)}, {v(y0+3)}")
            a(f"v_cvt_pk_bf16_f32 {v(y0)}, {v(y0)}, {v(y0+1)}")
            a(f"v_mul_f32 {v(yb+k)}, s{68+ch}, {v(xn+k)}\nv_mul_f32 {v(yb+k+1)}, s{68+ch}, {v(xn+k+1)}")
            a(f"v_cvt_pk_bf16_f32 {v(y0+1)}, {v(yb+k)}, {v(yb+k+1)}")
            a(f"v_lshlrev_b32 {v(yb+k)}, 16, {v(y0)}\nv_and_b32 {v(yb+k+1)}, 0xffff0000, {v(y0)}")
            a(f"v_lshlrev_b32 {v(y0+2)}, 16, {v(y0+1)}\nv_and_b32 {v(y0+3)}, 0xffff0000, {v(y0+1)}")
            a(f"v_add_f32 {v(yb+k)}, {v(yb+k)}, {v(y0+2)}\nv_add_f32 {v(yb+k+1)}, {v(yb+k+1)}, {v(y0+3)}")
            a(f"v_cvt_pk_bf16_f32 {v(y0)}, {v(yb+k)}, {v(yb+k+1)}")
            a(f"v_lshlrev_b32 {v(yb+k)}, 16, {v(y0)}\nv_and_b32 {v(yb+k+1)}, 0xffff0000, {v(y0)}")
            a(f"v_add_f32 {v(yb+k)}, {v(yb+k)}, {v(xx+k)}\nv_add_f32 {v(yb+k+1)}, {v(yb+k+1)}, {v(xx+k+1)}")
            a(f"v_cvt_pk_bf16_f32 {v(y0)}, {v(yb+k)}, {v(yb+k+1)}")
            a(f"v_lshlrev_b32 {v(yb+k)}, 16, {v(y0)}\nv_and_b32 {v(yb+k+1)}, 0xffff0000, {v(y0)}")
            a(f"v_add_f32 {v(xx+k)}, {v(yb+k)}, {v(xn+k)}\nv_add_f32 {v(xx+k+1)}, {v(yb+k+1)}, {v(xn+k+1)}")
    a(f"v_readfirstlane_b32 s86, {v(tp)}\nv_readfirstlane_b32 s87, {v(tp+1)}\nv_readfirstlane_b32 s84, {v(tp+2)}\nv_readfirstlane_b32 s85, {v(tp+3)}")
    for u_ in range(2):
        for tok in range(2):
            a(f"v_cvt_pk_bf16_f32 {v(o+2*u_+tok)}, {v(xx+4*u_+tok)}, {v(xx+4*u_+2+tok)}")
    a(f"s_lshl_b32 s68, {sCP}, 2\ns_add_u32 s69, s68, 0x100000")
    a(f"v_lshlrev_b32 {v(t0)}, 1, v0\nv_mov_b32 {v(t3)}, 0x7ff00000")
    for u_ in range(2):
        for tok in range(2):
            j = 2*u_ + tok
            a(f"v_add_u32 {v(t1)}, {1024*u_ + tok}, {v(t0)}\nv_cmp_eq_u32 vcc, s86, {v(t1)}\nv_cmp_eq_u32 s[78:79], s87, {v(t1)}\ns_or_b64 vcc, vcc, s[78:79]\nv_cndmask_b32 {v(vOj+j)}, {v(vO)}, {v(t3)}, vcc")
    for u_ in range(2):
        for tok in range(2):
            a(f"buffer_store_dword {v(o+2*u_+tok)}, {v(vOj+2*u_+tok)}, {sOUT}, s{68+u_} offen offset:{1024*tok}")
    stamp("epi")
    a(f"s_mov_b32 s78, 0x05040100\ns_mov_b32 s79, 0x07060302\nv_lshlrev_b32 {v(t0)}, 4, v0")
    for u_ in range(2):
        for tok in range(2):
            a(f"v_cvt_pk_bf16_f32 {v(se)}, {v(yb+4*u_+tok)}, {v(yb+4*u_+2+tok)}\nv_perm_b32 {v(se+1)}, {v(vU+2*u_+1)}, {v(vU+2*u_)}, s{78+tok}")
            a(f"ds_write_b64 {v(t0)}, {v(se,2)} offset:{L_SEL + 8192*u_ + 8*tok}")
    R.release(mk)
    a("s_waitcnt lgkmcnt(0)\ns_barrier")
    a(f"s_cmp_lg_u32 {sW}, 4\ns_cbranch_scc1 L_fin")
    mk = R.mark()
    pl = R.get(16, 2); vP0 = R.get(); vP1 = R.get(); sm = R.get(4); sel = R.get(2, 2)
    a(f"v_lshlrev_b32 {v(vP0)}, 13, {v(lane)}\nv_add_u32 {v(vP1)}, 0x80000, {v(vP0)}\nv_cmp_gt_u32 vcc, {NPROD - 64}, {v(lane)}\nv_mov_b32 {v(t0)}, 0x7ff00000\nv_cndmask_b32 {v(vP1)}, {v(t0)}, {v(vP1)}, vcc")
    a(f"s_mov_b64 s[90:91], vcc\ns_lshl_b32 s68, {sCP}, 5\ns_add_u32 s68, s68, {WS_PB}\ns_mov_b32 s69, 0")
    a(f"v_cmp_eq_u32 vcc, 0, {v(lane)}\nv_mov_b32 {v(t1)}, s87\nv_mov_b32 {v(t2)}, s86\nv_cndmask_b32 {v(t1)}, {v(t1)}, {v(t2)}, vcc")
    a(f"v_mov_b32 {v(t2)}, s85\nv_mov_b32 {v(t3)}, s84\nv_cndmask_b32 {v(t2)}, {v(t2)}, {v(t3)}, vcc")
    a(f"v_lshlrev_b32 {v(t3)}, 3, {v(t1)}\nds_read_b64 {v(sel,2)}, {v(t3)} offset:{L_SEL}")
    a.label("L_ppoll")
    a(f"buffer_load_dwordx4 {v(pl,4)}, {v(vP0)}, {sWS}, s68 offen sc1\nbuffer_load_dwordx4 {v(pl+4,4)}, {v(vP0)}, {sWS}, s68 offen offset:16 sc1")
    a(f"buffer_load_dwordx4 {v(pl+8,4)}, {v(vP1)}, {sWS}, s68 offen sc1\nbuffer_load_dwordx4 {v(pl+12,4)}, {v(vP1)}, {sWS}, s68 offen offset:16 sc1")
    a("s_waitcnt vmcnt(0)")
    a(f"v_cmp_ne_u32 vcc, {sNON}, {v(pl+11)}\nv_cmp_ne_u32 s[78:79], {sNON}, {v(pl+15)}\ns_or_b64 vcc, vcc, s[78:79]\ns_and_b64 vcc, vcc, s[90:91]")
    a(f"v_cmp_ne_u32 s[78:79], {sNON}, {v(pl+3)}\ns_or_b64 vcc, vcc, s[78:79]\nv_cmp_ne_u32 s[78:79], {sNON}, {v(pl+7)}\ns_or_b64 vcc, vcc, s[78:79]")
    a(f"s_cmp_eq_u64 vcc, 0\ns_cbranch_scc1 L_pok\ns_add_u32 s69, s69, 1\ns_cmp_lt_u32 s69, 100000\ns_cbranch_scc1 L_ppoll")
    a.label("L_pok")
    for k, (x0, x1) in enumerate(((pl, pl+8), (pl+1, pl+9), (pl+2, pl+10), (pl+4, pl+12))):
        a(f"v_add_f32 {v(sm+k)}, {v(x0)}, {v(x1)}")
    wave_reduce([sm, sm+1, sm+2, sm+3])
    a(f"v_readlane_b32 s92, {v(sm)}, 63\nv_readlane_b32 s93, {v(sm+1)}, 63\nv_readlane_b32 s94, {v(sm+2)}, 63\nv_readlane_b32 s95, {v(sm+3)}, 63")
    a(f"v_cmp_eq_u32 vcc, 0, {v(lane)}\nv_mov_b32 {v(sm)}, s94\nv_mov_b32 {v(sm+1)}, s95\nv_mov_b32 {v(sm+2)}, s92\nv_mov_b32 {v(sm+3)}, s93")
    a(f"v_cndmask_b32 {v(sm)}, {v(sm)}, {v(sm+2)}, vcc\nv_cndmask_b32 {v(sm+1)}, {v(sm+1)}, {v(sm+3)}, vcc")
    a(f"v_and_b32 {v(t2)}, 0xffff0000, {v(t2)}\nv_ashrrev_i32 {v(t3)}, 31, {v(t2)}\nv_not_b32 {v(t3)}, {v(t3)}\nv_or_b32 {v(t3)}, 0x80000000, {v(t3)}\nv_xor_b32 {v(t2)}, {v(t2)}, {v(t3)}\nv_and_b32 {v(t2)}, 0xffff0000, {v(t2)}")
    a(f"v_mul_f32 {v(t2)}, 0xbfb8aa3b, {v(t2)}\nv_exp_f32 {v(t2)}, {v(t2)}\nv_add_f32 {v(t2)}, 1.0, {v(t2)}\nv_rcp_f32 {v(t2)}, {v(t2)}\nv_cvt_pk_bf16_f32 {v(t2)}, {v(t2)}, {v(t2)}\nv_and_b32 {v(t2)}, 0xffff0000, {v(t2)}")
    a(f"v_cvt_pk_bf16_f32 {v(sm)}, {v(sm)}, {v(sm+1)}\nv_and_b32 {v(sm+1)}, 0xffff0000, {v(sm)}\nv_lshlrev_b32 {v(sm)}, 16, {v(sm)}")
    a(f"v_mul_f32 {v(sm)}, {v(sm)}, {v(t2)}\nv_mul_f32 {v(sm+1)}, {v(sm+1)}, {v(t2)}\nv_cvt_pk_bf16_f32 {v(sm)}, {v(sm)}, {v(sm+1)}")
    a(f"v_and_b32 {v(sm+1)}, 0xffff0000, {v(sm)}\nv_lshlrev_b32 {v(sm)}, 16, {v(sm)}\ns_waitcnt lgkmcnt(0)")
    a(f"v_lshlrev_b32 {v(sm+2)}, 16, {v(sel+1)}\nv_and_b32 {v(sm+3)}, 0xffff0000, {v(sel+1)}\nv_add_f32 {v(sm)}, {v(sm)}, {v(sm+2)}\nv_add_f32 {v(sm+1)}, {v(sm+1)}, {v(sm+3)}")
    a(f"v_cvt_pk_bf16_f32 {v(sm)}, {v(sm)}, {v(sm+1)}\nv_and_b32 {v(sm+1)}, 0xffff0000, {v(sm)}\nv_lshlrev_b32 {v(sm)}, 16, {v(sm)}")
    a(f"v_lshlrev_b32 {v(sm+2)}, 16, {v(sel)}\nv_and_b32 {v(sm+3)}, 0xffff0000, {v(sel)}\nv_add_f32 {v(sm)}, {v(sm)}, {v(sm+2)}\nv_add_f32 {v(sm+1)}, {v(sm+1)}, {v(sm+3)}")
    a(f"v_cvt_pk_bf16_f32 {v(sm)}, {v(sm)}, {v(sm+1)}\nv_lshlrev_b32 {v(t1)}, 10, {v(t1)}\ns_lshl_b32 s68, {sCP}, 2")
    a(f"s_mov_b64 exec, 3\nbuffer_store_dword {v(sm)}, {v(t1)}, {sOUT}, s68 offen\ns_mov_b64 exec, -1")
    R.release(mk)
    a.label("L_fin")
    stamp("fin")
    if debug_dump:
        a("s_waitcnt lgkmcnt(0)\ns_barrier")
        a(f"s_mul_i32 s68, s2, {LDS_BYTES}\ns_add_u32 s68, s68, {WS_DUMP}\nv_lshlrev_b32 {v(t0)}, 2, v0\ns_mov_b32 s69, 0")
        a.label("L_dump")
        a(f"ds_read_b32 {v(t1)}, {v(t0)}\ns_waitcnt lgkmcnt(0)\nbuffer_store_dword {v(t1)}, {v(t0)}, {sWS}, s68 offen")
        a(f"v_add_u32 {v(t0)}, 2048, {v(t0)}\ns_add_u32 s69, s69, 2048\ns_cmp_lt_u32 s69, {LDS_BYTES}\ns_cbranch_scc1 L_dump")
    if stamps:
        a("s_waitcnt vmcnt(0)")
        stamp("end")
        a(f"s_lshl_b32 s68, s2, 3\ns_add_u32 s68, s68, {sW}\ns_lshl_b32 s68, s68, 8\ns_add_u32 s68, s68, {WS_STAMP}")
        a(f"v_lshlrev_b32 {v(t0)}, 2, {v(lane)}\nbuffer_store_dword {v(vST)}, {v(t0)}, {sWS}, s68 offen")
    a.label("L_end")
    a("s_endpgm")
    body = a.finalize()
    nv = (R.hi + 7) // 8 * 8
    text = f"""; Fused LayerNorm + S4D convolution + top-2 MoE residual (one persistent workgroup per CU).
; @launch grid=(256,1,1) block=(512,1,1) lds={LDS_BYTES}
.amdgcn_target "amdgcn-amd-amdhsa--gfx950"
.text
.globl {KNAME}
.p2align 8
.type {KNAME},@function
{KNAME}:
{body}.section .rodata,"a"
.p2align 6
.amdhsa_kernel {KNAME}
  .amdhsa_next_free_vgpr {nv}
  .amdhsa_next_free_sgpr 102
  .amdhsa_accum_offset {nv}
  .amdhsa_group_segment_fixed_size 0
  .amdhsa_kernarg_size 120
  .amdhsa_user_sgpr_count 2
  .amdhsa_user_sgpr_kernarg_segment_ptr 1
  .amdhsa_system_sgpr_workgroup_id_x 1
.end_amdhsa_kernel
"""
    return text, stamp_slots, R.hi

if __name__ == "__main__":
    import argparse
    p = argparse.ArgumentParser()
    p.add_argument("-o", default="k.s"); p.add_argument("--dump", action="store_true"); p.add_argument("--stamps", action="store_true")
    args = p.parse_args()
    text, slots, hi = gen(debug_dump=args.dump, stamps=args.stamps)
    open(args.o, "w").write(text)
    print("vgprs", hi, "stamps", slots, "lines", text.count("\n"))
```

```python
import sys
from asmlib import Asm

KNAME = "parallel_sum__ssm_conv_s4d__moe_arch_mod__prompt_kernel"

WS_XB = 0
WS_SB = 4 << 20
WS_PB = (4 << 20) + 65536
WS_STAMP = 200 << 20
WS_DUMP = 16 << 20

CHS   = 34816
GHT   = 8704
GHROW = 544
def CB(c): return 16 * (272 * c + 4 * (c & 3) + 2 * (c >> 2))
L_U    = 69632
L_UCH  = 4608
L_KT   = 78848
L_KTCH = 1600
L_YP   = 82176
L_XT   = L_YP
L_STAT = 114944
L_MISC = 123136
L_MW   = 124160
L_MS   = 156928
LDS_BYTES = 160768
M_NONCE = L_MISC
M_STG   = L_MISC + 16
M_CAND  = L_MISC + 96
M_SEL   = L_MISC + 176
M_CNT   = L_MISC + 208
M_TOP   = L_MISC + 224
L_XS    = L_MS
L_PART  = L_MS + 2048
L_SEL   = 0
NPROD = 112

sX, sOUT, sWS, sLAR, sAIM, sCRE, sCIM, sWR, sWG, sWU, sWD, sDBG = [f"s[{i}:{i+3}]" for i in range(8, 56, 4)]
def srd_lo(s): return int(s[2:s.index(":")])
sW, sXCD, sY, sCP, sNON, sLDT, sDSK = "s56", "s57", "s58", "s59", "s60", "s61", "s62"

class Regs:
    def __init__(self, start=1, limit=256):
        self.n = start; self.limit = limit; self.hi = start
    def get(self, cnt=1, align=1):
        while self.n % align: self.n += 1
        b = self.n; self.n += cnt
        assert self.n <= self.limit, "out of VGPRs"
        self.hi = max(self.hi, self.n)
        return b
    def mark(self): return self.n
    def release(self, m): self.n = m

def v(i, n=1): return f"v{i}" if n == 1 else f"v[{i}:{i+n-1}]"

def gen(debug_dump=None, stamps=False, dbgspan=False):
    a = Asm(); R = Regs()
    stamp_slots = []
    def stamp(name):
        if not stamps: return
        k = len(stamp_slots); stamp_slots.append(name)
        a(f"s_memrealtime s[{96}:{97}]\ns_waitcnt lgkmcnt(0)\nv_writelane_b32 {v(vST)}, s96, {k}")
    lane = R.get(); tid = 0
    vST = R.get()
    a("s_cmp_ge_u32 s2, 256")
    a("s_cbranch_scc1 L_end")
    a("s_load_dwordx2 s[8:9], s[0:1], 0")
    a("s_load_dwordx2 s[20:21], s[0:1], 8")
    a("s_load_dwordx2 s[24:25], s[0:1], 16")
    a("s_load_dwordx2 s[28:29], s[0:1], 24")
    a("s_load_dwordx2 s[32:33], s[0:1], 32")
    a("s_load_dwordx2 s[36:37], s[0:1], 64")
    a("s_memrealtime s[70:71]")
    t0 = R.get(); t1 = R.get(); t2 = R.get(); t3 = R.get()
    a(f"v_lshrrev_b32 {v(t0)}, 6, v0")
    a(f"v_and_b32 {v(lane)}, 63, v0")
    a(f"v_readfirstlane_b32 {sW}, {v(t0)}")
    a(f"s_and_b32 {sXCD}, s2, 7")
    a(f"s_lshr_b32 {sY}, s2, 3")
    for s, size in ((sX, 0x200000), (sLAR, 0x20000), (sAIM, 0x20000), (sCRE, 0x20000), (sCIM, 0x20000), (sWR, 1024)):
        b = srd_lo(s); a(f"s_mov_b32 s{b+2}, {size:#x}\ns_mov_b32 s{b+3}, 0x20000")
    vToff = R.get(); vL16 = R.get(); vPoff = R.get()
    a(f"v_lshrrev_b32 {v(t0)}, 2, {v(lane)}\nv_lshlrev_b32 {v(t0)}, 10, {v(t0)}")
    a(f"v_and_b32 {v(t1)}, 3, {v(lane)}\nv_lshl_or_b32 {v(vToff)}, {v(t1)}, 4, {v(t0)}")
    a(f"v_lshlrev_b32 {v(vL16)}, 4, {v(lane)}")
    a(f"v_lshlrev_b32 {v(vPoff)}, 1, {v(lane)}")
    a(f"s_lshr_b32 s63, {sW}, 1\ns_lshl_b32 s63, s63, 4\ns_lshl_b32 s64, {sY}, 6\ns_add_u32 s63, s63, s64\ns_lshl_b32 s63, s63, 10")
    a(f"s_lshl_b32 s64, {sXCD}, 7\ns_add_u32 s63, s63, s64\ns_and_b32 s65, {sW}, 1\ns_lshl_b32 s64, s65, 6\ns_add_u32 s63, s63, s64")
    a(f"s_lshl_b32 s64, s2, 3\ns_add_u32 s64, s64, {sW}\ns_lshl_b32 s64, s64, 10")
    a(f"s_lshl_b32 {sCP}, {sXCD}, 5\ns_add_u32 {sCP}, {sCP}, {sY}")
    a(f"s_bfe_u32 s66, {sW}, 0x10001\ns_lshl_b32 s67, {sCP}, 1\ns_add_u32 s67, s67, s66\ns_lshl_b32 s67, s67, 8\ns_lshl_b32 s68, s65, 7\ns_add_u32 s67, s67, s68")
    vXT = R.get(4, 2); vXR = R.get(4, 2); vWR = R.get(4, 2); vPar = R.get(4)
    a("s_waitcnt lgkmcnt(0)")
    a(f"buffer_load_dwordx4 {v(vXT,4)}, {v(vToff)}, {sX}, s63 offen")
    a(f"buffer_load_dwordx4 {v(vXR,4)}, {v(vL16)}, {sX}, s64 offen")
    a(f"buffer_load_ushort {v(vPar)}, {v(vPoff)}, {sLAR}, s67 offen")
    a(f"buffer_load_ushort {v(vPar+1)}, {v(vPoff)}, {sAIM}, s67 offen")
    a(f"buffer_load_ushort {v(vPar+2)}, {v(vPoff)}, {sCRE}, s67 offen")
    a(f"buffer_load_ushort {v(vPar+3)}, {v(vPoff)}, {sCIM}, s67 offen")
    a(f"buffer_load_dwordx4 {v(vWR,4)}, {v(vL16)}, {sWR}, 0 offen")
    a("s_load_dwordx2 s[16:17], s[0:1], 112")
    a("s_load_dwordx2 s[52:53], s[0:1], 104")
    a("s_load_dwordx4 s[4:7], s[0:1], 40")
    a("s_load_dwordx2 s[12:13], s[0:1], 96")
    a("s_load_dwordx2 s[40:41], s[0:1], 72")
    a("s_load_dwordx2 s[44:45], s[0:1], 80")
    a("s_load_dwordx2 s[48:49], s[0:1], 88")
    for s, size in ((sWS, 0x10000000), (sDBG, 256), (sOUT, 0x200000), (sWG, 1835008), (sWU, 1835008), (sWD, 1835008)):
        b = srd_lo(s); a(f"s_mov_b32 s{b+2}, {size:#x}\ns_mov_b32 s{b+3}, 0x20000")
    if stamps:
        a(f"v_mov_b32 {v(vST)}, 0\nv_writelane_b32 {v(vST)}, s70, 63")
    a("s_waitcnt lgkmcnt(0)")
    a(f"s_lshl_b32 s68, {sCP}, 2")
    a(f"s_load_dword {sLDT}, s[4:5], s68")
    a(f"s_load_dword {sDSK}, s[6:7], s68")
    vZero = R.get()
    a(f"v_mov_b32 {v(vZero)}, 0")
    a(f"s_or_b32 s68, s2, {sW}\ns_cmp_lg_u32 s68, 0\ns_cbranch_scc1 L_nononce")
    a(f"s_or_b32 s68, s70, 1\nv_mov_b32 {v(t0)}, s68")
    a(f"s_mov_b64 exec, 1\nbuffer_store_dword {v(t0)}, {v(vZero)}, {sDBG}, 0 offen sc1\ns_mov_b64 exec, -1")
    a.label("L_nononce")

    vXTw = R.get(); vXTr = R.get(); vXBs = R.get()
    a(f"s_mul_i32 s68, {sW}, 1280\ns_add_u32 s68, s68, {L_XT}")
    a(f"v_lshrrev_b32 {v(t0)}, 2, {v(lane)}\nv_mul_u32_u24 {v(t0)}, 80, {v(t0)}\nv_and_b32 {v(t1)}, 3, {v(lane)}\nv_lshlrev_b32 {v(t1)}, 4, {v(t1)}\nv_add3_u32 {v(vXTw)}, {v(t0)}, {v(t1)}, s68")
    a(f"v_and_b32 {v(t0)}, 7, {v(lane)}\nv_lshrrev_b32 {v(t1)}, 3, {v(lane)}")
    a(f"v_mul_u32_u24 {v(t2)}, 160, {v(t0)}\nv_lshl_add_u32 {v(t2)}, {v(t1)}, 2, {v(t2)}\nv_add_u32 {v(vXTr)}, s68, {v(t2)}")
    a(f"v_lshlrev_b32 {v(t1)}, 9, {v(t1)}\nv_lshl_or_b32 {v(vXBs)}, {v(t0)}, 4, {v(t1)}")
    a(f"s_lshl_b32 s72, {sXCD}, 5\ns_add_u32 s72, s72, {sY}\ns_lshl_b32 s72, s72, 14\ns_lshl_b32 s68, s65, 13\ns_add_u32 s72, s72, s68")
    a(f"s_lshr_b32 s68, {sW}, 1\ns_lshl_b32 s68, s68, 7\ns_add_u32 s72, s72, s68\ns_add_u32 s73, s72, 4096")
    vXBl = R.get(); vSBl = R.get()
    a(f"v_lshrrev_b32 {v(t0)}, 5, v0\nv_lshlrev_b32 {v(t0)}, 14, {v(t0)}\nv_and_b32 {v(t1)}, 31, v0\nv_lshl_or_b32 {v(vXBl)}, {v(t1)}, 4, {v(t0)}")
    a(f"v_lshlrev_b32 {v(vSBl)}, 4, v0")
    a(f"s_lshl_b32 s74, {sXCD}, 19\ns_lshl_b32 s68, {sY}, 9\ns_add_u32 s74, s74, s68\ns_add_u32 s75, s74, 0x40000")
    a(f"s_mov_b32 s76, {WS_SB}\ns_mov_b32 s77, {WS_SB + 8192}")
    vGHw = R.get()
    a(f"s_mul_i32 s68, s66, {CHS}\ns_lshl_b32 s69, s65, 8\ns_add_u32 s68, s68, s69\nv_lshl_add_u32 {v(vGHw)}, {v(lane)}, 2, s68")
    vKA = R.get(); vKB = R.get(); vKT0 = R.get(); vKT1 = R.get()
    vM = R.get(); vQ = R.get()
    a(f"v_and_b32 {v(vM)}, 15, {v(lane)}\nv_lshrrev_b32 {v(vQ)}, 4, {v(lane)}")
    a(f"v_mul_u32_u24 {v(t0)}, {GHROW}, {v(vM)}\nv_lshl_add_u32 {v(t0)}, {v(vQ)}, 4, {v(t0)}")
    a(f"s_lshr_b32 s69, {sW}, 1")
    a(f"s_mul_i32 s68, s65, {CHS}\ns_add_u32 s78, s69, 1\ns_mul_i32 s78, s78, {GHT}\ns_add_u32 s78, s78, s68")
    a(f"s_cmp_eq_u32 s69, 2\ns_cselect_b32 s79, s68, s78\ns_cselect_b32 s80, s78, s68")
    a(f"v_add_u32 {v(vKA)}, s79, {v(t0)}\nv_add_u32 {v(vKB)}, s80, {v(t0)}")
    a(f"v_and_b32 {v(t0)}, 1, {v(vQ)}\nv_lshlrev_b32 {v(t0)}, 2, {v(t0)}\nv_lshrrev_b32 {v(t1)}, 1, {v(vQ)}\nv_lshl_add_u32 {v(t0)}, {v(t1)}, 7, {v(t0)}\nv_lshl_add_u32 {v(t0)}, {v(vM)}, 3, {v(t0)}")
    a(f"v_lshlrev_b32 {v(t2)}, 6, {v(vQ)}\nv_add_u32 {v(t2)}, 256, {v(t2)}")
    a(f"v_cmp_gt_u32 vcc, 2, {v(vQ)}\nv_cndmask_b32 {v(t3)}, 1, 2, vcc\nv_lshlrev_b32 {v(t3)}, {v(t3)}, {v(vM)}\nv_add_u32 {v(t2)}, {v(t2)}, {v(t3)}")
    a(f"v_cndmask_b32 {v(t3)}, 32, 2, vcc")
    a(f"v_lshlrev_b32 {v(t1)}, 4, {v(vM)}\nv_lshl_add_u32 {v(t1)}, {v(vQ)}, 2, {v(t1)}\nv_add_u32 {v(t1)}, 512, {v(t1)}")
    a(f"s_cmp_eq_u32 s69, 1\ns_cselect_b64 vcc, -1, 0\nv_cndmask_b32 {v(t0)}, {v(t0)}, {v(t2)}, vcc\nv_cndmask_b32 {v(t3)}, 2, {v(t3)}, vcc")
    a(f"s_cmp_eq_u32 s69, 2\ns_cselect_b64 vcc, -1, 0\nv_cndmask_b32 {v(t0)}, {v(t0)}, {v(t1)}, vcc")
    a(f"s_mul_i32 s68, s65, {L_KTCH}\ns_add_u32 s68, s68, {L_KT}")
    a(f"v_lshl_add_u32 {v(vKT0)}, {v(t0)}, 1, s68\nv_lshl_add_u32 {v(vKT1)}, {v(t3)}, 1, {v(vKT0)}")
    vGA = R.get(16); vKCw = R.get()
    a(f"v_and_b32 {v(t0)}, 255, v0\nv_lshlrev_b32 {v(t1)}, 3, {v(t0)}\nv_sub_u32 {v(t1)}, 2047, {v(t1)}")
    a(f"s_lshr_b32 s68, {sW}, 2\ns_mul_i32 s69, s68, {CHS}\nv_lshl_add_u32 {v(vKCw)}, {v(t0)}, 4, s69")
    a(f"s_mul_i32 s68, s68, {L_KTCH}\ns_add_u32 s68, s68, {L_KT}\ns_mov_b32 s69, 0x4280")
    for tt in range(0, 16, 2):
        a(f"v_subrev_u32 {v(t2)}, {tt}, {v(t1)}\nv_subrev_u32 {v(t3)}, {tt+1}, {v(t1)}")
        a(f"v_cvt_f32_i32 {v(vGA+tt)}, {v(t2)}\nv_cvt_f32_i32 {v(vGA+tt+1)}, {v(t3)}")
        a(f"v_cvt_pk_bf16_f32 {v(t0)}, {v(vGA+tt)}, {v(vGA+tt+1)}")
        a(f"v_and_b32 {v(vGA+tt)}, 0xffff, {v(t0)}\nv_lshrrev_b32 {v(vGA+tt+1)}, 16, {v(t0)}")
        for k, lam in ((tt, t2), (tt+1, t3)):
            a(f"v_subrev_u32 {v(vGA+k)}, s69, {v(vGA+k)}\nv_cmp_gt_i32 vcc, 256, {v(lam)}\nv_cndmask_b32 {v(vGA+k)}, {v(vGA+k)}, {v(lam)}, vcc")
            if k >= 8:
                a(f"v_cmp_gt_i32 vcc, 0, {v(lam)}\nv_mov_b32 {v(t0)}, 768\nv_cndmask_b32 {v(vGA+k)}, {v(vGA+k)}, {v(t0)}, vcc")
            a(f"v_lshl_add_u32 {v(vGA+k)}, {v(vGA+k)}, 1, s68")
    a(f"v_lshrrev_b32 {v(t0)}, 7, v0\nv_mul_u32_u24 {v(t0)}, {L_UCH}, {v(t0)}\nv_and_b32 {v(t1)}, 127, v0\nv_lshl_add_u32 {v(t0)}, {v(t1)}, 2, {v(t0)}\nv_add_u32 {v(t0)}, {L_U}, {v(t0)}")
    a(f"s_cmp_ge_u32 {sW}, 4\ns_cbranch_scc1 L_nopad\nds_write_b32 {v(t0)}, {v(vZero)}")
    a(f"v_mov_b32 {v(t0)}, {L_KT + 1536}\nds_write_b32 {v(t0)}, {v(vZero)}\nds_write_b32 {v(t0)}, {v(vZero)} offset:{L_KTCH}\nv_mov_b32 {v(t0)}, {M_CNT}\nds_write_b32 {v(t0)}, {v(vZero)}")
    a.label("L_nopad")
    vTag = R.get(2, 2)
    a(f"s_cmp_lg_u32 {sW}, 0\ns_cbranch_scc1 L_npoll_done\ns_mov_b32 s68, 0")
    a.label("L_npoll")
    a(f"buffer_load_dword {v(t0)}, {v(vZero)}, {sDBG}, 0 offen sc1\ns_waitcnt vmcnt(0)\nv_readfirstlane_b32 {sNON}, {v(t0)}")
    a(f"s_add_u32 s68, s68, 1\ns_cmp_lg_u32 {sNON}, 0\ns_cbranch_scc1 L_npoll_ok\ns_cmp_lt_u32 s68, 200000\ns_cbranch_scc1 L_npoll")
    a.label("L_npoll_ok")
    a(f"v_mov_b32 {v(t0)}, {M_NONCE}\nv_mov_b32 {v(t1)}, {sNON}\nds_write_b32 {v(t0)}, {v(t1)}")
    a.label("L_npoll_done")
    stamp("p0b")
    vS0 = R.get(4, 2); vS1 = R.get(4, 2)
    a(f"s_waitcnt vmcnt(6)\nds_write_b128 {v(vXTw)}, {v(vXT,4)}")
    a(f"s_waitcnt lgkmcnt(0)\ns_barrier")
    a(f"v_mov_b32 {v(t0)}, {M_NONCE}\nds_read_b32 {v(vTag)}, {v(t0)}")
    a(f"ds_read2_b32 {v(vS0,2)}, {v(vXTr)} offset0:0 offset1:20\nds_read2_b32 {v(vS1,2)}, {v(vXTr)} offset0:8 offset1:28")
    a(f"s_waitcnt lgkmcnt(2)\nv_mov_b32 {v(vS0+2)}, {v(vTag)}\nv_mov_b32 {v(vS0+3)}, {v(vTag)}\nv_mov_b32 {v(vS1+2)}, {v(vTag)}\nv_mov_b32 {v(vS1+3)}, {v(vTag)}")
    a(f"v_readfirstlane_b32 {sNON}, {v(vTag)}")
    a(f"s_waitcnt lgkmcnt(0)")
    a(f"buffer_store_dwordx4 {v(vS0,4)}, {v(vXBs)}, {sWS}, s72 offen sc1\nbuffer_store_dwordx4 {v(vS1,4)}, {v(vXBs)}, {sWS}, s73 offen sc1")
    stamp("p1")
    mk = R.mark()
    f = R.get(8); d = R.get(8); s1 = R.get(); s2 = R.get(); wr = R.get(8); pk = R.get(4)
    a("s_waitcnt vmcnt(7)")
    for k in range(4):
        a(f"v_lshlrev_b32 {v(f+2*k)}, 16, {v(vXR+k)}\nv_and_b32 {v(f+2*k+1)}, 0xffff0000, {v(vXR+k)}")
    a(f"v_readfirstlane_b32 s68, {v(f)}")
    for k in range(8): a(f"v_subrev_f32 {v(d+k)}, s68, {v(f+k)}")
    a(f"v_add_f32 {v(s1)}, {v(d)}, {v(d+1)}\nv_mul_f32 {v(s2)}, {v(d)}, {v(d)}\nv_fmac_f32 {v(s2)}, {v(d+1)}, {v(d+1)}")
    for k in range(2, 8): a(f"v_add_f32 {v(s1)}, {v(s1)}, {v(d+k)}\nv_fmac_f32 {v(s2)}, {v(d+k)}, {v(d+k)}")
    def wave_reduce(regs, op="v_add_f32"):
        for sh in (1, 2, 4, 8):
            for r in regs: a(f"{op}_dpp {v(r)}, {v(r)}, {v(r)} row_shr:{sh} row_mask:0xf bank_mask:0xf bound_ctrl:0")
        for r in regs: a(f"{op}_dpp {v(r)}, {v(r)}, {v(r)} row_bcast:15 row_mask:0xa bank_mask:0xf")
        for r in regs: a(f"{op}_dpp {v(r)}, {v(r)}, {v(r)} row_bcast:31 row_mask:0xc bank_mask:0xf")
    wave_reduce([s1, s2])
    a(f"v_readlane_b32 s69, {v(s1)}, 63\nv_readlane_b32 s78, {v(s2)}, 63")
    a(f"s_mov_b32 s79, 0x3b000000")
    a(f"v_mov_b32 {v(s1)}, s69\nv_mov_b32 {v(s2)}, s78\nv_mul_f32 {v(s1)}, s79, {v(s1)}\nv_mul_f32 {v(s2)}, s79, {v(s2)}")
    a(f"v_fma_f32 {v(s2)}, -{v(s1)}, {v(s1)}, {v(s2)}\nv_max_f32 {v(s2)}, 0, {v(s2)}\nv_add_f32 {v(s1)}, s68, {v(s1)}")
    a(f"v_cvt_pk_bf16_f32 {v(t0)}, {v(s1)}, {v(s2)}")
    a(f"v_and_b32 {v(t1)}, 0xffff0000, {v(t0)}\nv_add_f32 {v(t1)}, 0x3727c5ac, {v(t1)}\nv_cvt_pk_bf16_f32 {v(t1)}, {v(t1)}, {v(t1)}")
    a(f"v_and_b32 {v(t1)}, 0xffff0000, {v(t1)}\nv_sqrt_f32 {v(t1)}, {v(t1)}\nv_cvt_pk_bf16_f32 {v(t1)}, {v(t1)}, {v(t1)}")
    a(f"v_and_b32 {v(t1)}, 0xffff0000, {v(t1)}")
    vMS = R.get(2, 2)
    a(f"v_and_b32 {v(t2)}, 0xffff, {v(t0)}\nv_or_b32 {v(vMS)}, {v(t2)}, {v(t1)}\nv_lshlrev_b32 {v(t0)}, 16, {v(t0)}\nv_rcp_f32 {v(t1)}, {v(t1)}")
    a("s_waitcnt vmcnt(2)")
    for k in range(4):
        a(f"v_lshlrev_b32 {v(wr+2*k)}, 16, {v(vWR+k)}\nv_and_b32 {v(wr+2*k+1)}, 0xffff0000, {v(vWR+k)}")
    for k in range(8): a(f"v_sub_f32 {v(d+k)}, {v(f+k)}, {v(t0)}")
    for k in range(4): a(f"v_cvt_pk_bf16_f32 {v(pk+k)}, {v(d+2*k)}, {v(d+2*k+1)}")
    for k in range(4): a(f"v_lshlrev_b32 {v(d+2*k)}, 16, {v(pk+k)}\nv_and_b32 {v(d+2*k+1)}, 0xffff0000, {v(pk+k)}")
    for k in range(8): a(f"v_mul_f32 {v(d+k)}, {v(d+k)}, {v(t1)}")
    for k in range(4): a(f"v_cvt_pk_bf16_f32 {v(pk+k)}, {v(d+2*k)}, {v(d+2*k+1)}")
    for k in range(4): a(f"v_lshlrev_b32 {v(d+2*k)}, 16, {v(pk+k)}\nv_and_b32 {v(d+2*k+1)}, 0xffff0000, {v(pk+k)}")
    a(f"v_mul_f32 {v(s1)}, {v(d)}, {v(wr)}")
    for k in range(1, 8): a(f"v_fmac_f32 {v(s1)}, {v(d+k)}, {v(wr+k)}")
    wave_reduce([s1])
    a(f"v_readlane_b32 s69, {v(s1)}, 63")
    a(f"v_mov_b32 {v(s1)}, s69\nv_cvt_pk_bf16_f32 {v(vMS+1)}, {v(s1)}, {v(s1)}\nv_and_b32 {v(vMS+1)}, 0xffff, {v(vMS+1)}")
    a(f"s_lshl_b32 s68, {sW}, 3\ns_add_u32 s68, s68, {M_STG}\nv_mov_b32 {v(t0)}, s68")
    a(f"s_mov_b64 exec, 1\nds_write_b64 {v(t0)}, {v(vMS,2)}\ns_mov_b64 exec, -1")
    a("s_waitcnt lgkmcnt(0)\ns_barrier")
    a(f"s_cmp_lg_u32 {sW}, 0\ns_cbranch_scc1 L_nostat")
    su = R.get(4, 2)
    a(f"s_mov_b64 exec, 15\nv_lshlrev_b32 {v(t0)}, 4, {v(lane)}\nv_add_u32 {v(t2)}, {M_STG}, {v(t0)}\nds_read_b128 {v(su,4)}, {v(t2)}")
    a(f"s_lshl_b32 s68, s2, 6\ns_add_u32 s68, s68, {WS_SB}")
    a(f"s_waitcnt lgkmcnt(0)\nv_lshl_or_b32 {v(su+1)}, {v(su+3)}, 16, {v(su+1)}\nv_mov_b32 {v(su+3)}, {v(vTag)}")
    a(f"v_mov_b32 {v(t1)}, {v(su+1)}\nv_mov_b32 {v(su+1)}, {v(su+2)}\nv_mov_b32 {v(su+2)}, {v(t1)}")
    a(f"buffer_store_dwordx4 {v(su,4)}, {v(t0)}, {sWS}, s68 offen sc1\ns_mov_b64 exec, -1")
    a.label("L_nostat")
    R.release(mk)
    stamp("p2")
    vWD = R.get(16, 2)
    a(f"s_cmp_lt_u32 {sW}, 4\ns_cbranch_scc1 L_nowts\ns_cmp_ge_u32 {sY}, 14\ns_cbranch_scc1 L_nowts")
    a(f"s_mul_i32 s81, {sXCD}, 14\ns_add_u32 s81, s81, {sY}")
    a(f"s_sub_u32 s82, {sW}, 4")
    a(f"v_lshrrev_b32 {v(t0)}, 1, {v(lane)}\nv_mul_u32_u24 {v(t0)}, 3584, {v(t0)}\nv_and_b32 {v(t1)}, 1, {v(lane)}\nv_lshl_add_u32 {v(t0)}, {v(t1)}, 4, {v(t0)}")
    a(f"s_mul_i32 s68, s82, {128*3584}\ns_lshl_b32 s69, s81, 5\ns_add_u32 s68, s68, s69\ns_lshl_b32 s69, s82, 12\ns_add_u32 s69, s69, {L_MW}")
    for i in range(4):
        for mat, srd in enumerate((sWG, sWU)):
            a(f"s_add_u32 m0, s69, {mat*16384 + i*1024}\ns_add_u32 s78, s68, {i*32*3584}\nbuffer_load_dwordx4 {v(t0)}, {srd}, s78 offen lds")
    a(f"v_and_b32 {v(t1)}, 255, v0\nv_lshlrev_b32 {v(t1)}, 2, {v(t1)}\ns_lshl_b32 s68, s81, 14")
    for i in range(16):
        if i % 4 == 0 and i: a(f"s_add_u32 s68, s68, 4096")
        a(f"buffer_load_dword {v(vWD+i)}, {v(t1)}, {sWD}, s68 offen offset:{(i % 4)*1024}")
    a.label("L_nowts")

    mk = R.mark()
    LOG2E = "0x3fb8aa3b"; INV2PI = "0x3e22f983"
    zr = R.get(); zi = R.get(); cr = R.get(); ci = R.get(); tq = R.get(4)
    rot = [0]
    def tmp():
        rot[0] = (rot[0] + 1) & 3
        return tq + rot[0]
    def cx(): return R.get(2)
    a(f"s_lshl_b32 s68, {sLDT}, 16\ns_and_b32 s69, {sLDT}, 0xffff0000\ns_cmp_eq_u32 s66, 0\ns_cselect_b32 s68, s68, s69")
    a(f"v_mov_b32 {v(t0)}, s68\nv_mul_f32 {v(t0)}, {LOG2E}, {v(t0)}\nv_exp_f32 {v(t0)}, {v(t0)}")
    a(f"v_lshlrev_b32 {v(t1)}, 16, {v(vPar)}\nv_mul_f32 {v(t1)}, {LOG2E}, {v(t1)}\nv_exp_f32 {v(t1)}, {v(t1)}")
    a(f"v_cvt_pk_bf16_f32 {v(t0)}, {v(t1)}, {v(t0)}")
    a(f"v_lshlrev_b32 {v(t1)}, 16, {v(t0)}\nv_and_b32 {v(t0)}, 0xffff0000, {v(t0)}")
    a(f"v_mul_f32 {v(zr)}, {v(t1)}, {v(t0)}\nv_mul_f32 {v(zr)}, 0xbfb8aa3b, {v(zr)}")
    a(f"v_lshlrev_b32 {v(t1)}, 16, {v(vPar+1)}\nv_mul_f32 {v(zi)}, {v(t1)}, {v(t0)}\nv_mul_f32 {v(zi)}, {INV2PI}, {v(zi)}")
    a(f"v_add_f32 {v(t0)}, {v(t0)}, {v(t0)}")
    a(f"v_lshlrev_b32 {v(t1)}, 16, {v(vPar+2)}\nv_mul_f32 {v(cr)}, {v(t1)}, {v(t0)}\nv_lshlrev_b32 {v(t1)}, 16, {v(vPar+3)}\nv_mul_f32 {v(ci)}, {v(t1)}, {v(t0)}")
    C = cr
    assert ci == cr + 1
    def cexp(tval):
        o = cx(); e = tmp(); g = tmp()
        import struct
        lit = lambda x: hex(struct.unpack("<I", struct.pack("<f", float(x)))[0])
        a(f"v_mul_f32 {v(e)}, {lit(tval)}, {v(zr)}\nv_mul_f32 {v(g)}, {lit(tval)}, {v(zi)}\nv_exp_f32 {v(e)}, {v(e)}\nv_fract_f32 {v(g)}, {v(g)}")
        a(f"v_cos_f32 {v(o)}, {v(g)}\nv_sin_f32 {v(o+1)}, {v(g)}\nv_mul_f32 {v(o)}, {v(o)}, {v(e)}\nv_mul_f32 {v(o+1)}, {v(o+1)}, {v(e)}")
        return o
    def cmul(x, y, o=None):
        o = cx() if o is None else o
        a(f"v_mul_f32 {v(o)}, {v(x)}, {v(y)}\nv_mul_f32 {v(o+1)}, {v(x)}, {v(y+1)}")
        a(f"v_fma_f32 {v(o)}, -{v(x+1)}, {v(y+1)}, {v(o)}\nv_fmac_f32 {v(o+1)}, {v(x+1)}, {v(y)}")
        return o
    def csq(x):
        o = cx(); e = tmp()
        a(f"v_mul_f32 {v(e)}, {v(x+1)}, {v(x+1)}\nv_mul_f32 {v(o+1)}, {v(x)}, {v(x+1)}\nv_fma_f32 {v(o)}, {v(x)}, {v(x)}, -{v(e)}\nv_add_f32 {v(o+1)}, {v(o+1)}, {v(o+1)}")
        return o
    def put(val, T, row, conj=False):
        e = tmp()
        a(f"v_cvt_pk_bf16_f32 {v(e)}, {v(val)}, {'-' if conj else ''}{v(val+1)}\nds_write_b32 {v(vGHw)}, {v(e)} offset:{T*GHT + row*GHROW}")
    scr = [R.get(2), R.get(2), R.get(2)]
    sc = [0]
    def rows(P, Q, T, row0, conj=False):
        put(P, T, row0, conj)
        for k, q_ in enumerate(Q):
            sc[0] = (sc[0] + 1) % 3
            put(cmul(P, q_, scr[sc[0]]), T, row0 + 1 + k, conj)
    a(f"s_cmp_ge_u32 {sW}, 4\ns_cbranch_scc1 L_pathY")
    mk2 = R.mark()
    E1 = cexp(1); E64 = cexp(64)
    E2 = csq(E1); E128 = csq(E64); E4 = csq(E2); E8 = csq(E4); E16 = csq(E8); E32 = csq(E16)
    E3 = cmul(E1, E2); E24 = cmul(E8, E16); E96 = cmul(E64, E32)
    P1 = cmul(C, E4); P2 = cmul(C, E128); P3 = cmul(P2, E4)
    for k, P in enumerate((C, P1, P2, P3)): rows(P, (E1, E2, E3), 1, 4*k)
    e = tmp(); a(f"v_mov_b32 {v(e)}, 0x3f80\nds_write_b32 {v(vGHw)}, {v(e)} offset:0")
    for k, q_ in enumerate((E8, E16, E24)): put(q_, 0, 1 + k, True)
    for k, P in enumerate((E32, E64, E96)): rows(P, (E8, E16, E24), 0, 4*(k+1), True)
    a("s_branch L_kgen_done")
    R.release(mk2)
    a.label("L_pathY")
    E2 = cexp(2); E128 = cexp(128)
    E4 = csq(E2); E256 = csq(E128); E512 = csq(E256); E1024 = csq(E512); E2048 = csq(E1024)
    E6 = cmul(E2, E4); E132 = cmul(E4, E128); E384 = cmul(E128, E256)
    P0 = cmul(C, E256); P1 = cmul(P0, E128); P2 = cmul(C, E512); P3 = cmul(P2, E256)
    rows(P0, (E2, E4, E6), 2, 0); rows(P1, (E2, E4, E6), 2, 4)
    rows(P2, (E4, E128, E132), 2, 8); rows(P3, (E4, E128, E132), 2, 12)
    P0 = cmul(C, E1024, P0); P1 = cmul(P0, E512, P1); P2 = cmul(C, E2048, P2)
    rows(P0, (E128, E256, E384), 3, 0); rows(P1, (E128, E256, E384), 3, 4)
    put(P2, 3, 8)
    a.label("L_kgen_done")
    R.release(mk)
    stamp("kgen")
    vXA = R.get(4, 2); vXB_ = R.get(4, 2); vSA = R.get(4, 2); vSB_ = R.get(4, 2)
    def xchg_loads():
        a(f"buffer_load_dwordx4 {v(vXA,4)}, {v(vXBl)}, {sWS}, s74 offen sc1\nbuffer_load_dwordx4 {v(vXB_,4)}, {v(vXBl)}, {sWS}, s75 offen sc1")
        a(f"buffer_load_dwordx4 {v(vSA,4)}, {v(vSBl)}, {sWS}, s76 offen sc1\nbuffer_load_dwordx4 {v(vSB_,4)}, {v(vSBl)}, {sWS}, s77 offen sc1")
    a("s_waitcnt lgkmcnt(0)\ns_barrier")
    xchg_loads()
    mk = R.mark()
    acc = R.get(4, 4); fa = R.get(32, 4); fb = R.get(32, 4)
    a(f"s_cmp_ge_u32 {sW}, 6\ns_cbranch_scc1 L_nokt")
    rd = lambda s_: a(f"ds_read_b128 {v(fa+4*s_,4)}, {v(vKA)} offset:{64*s_}\nds_read_b128 {v(fb+4*s_,4)}, {v(vKB)} offset:{64*s_}")
    for s_ in range(6): rd(s_)
    for k in range(4): a(f"v_mov_b32 {v(acc+k)}, 0")
    for s_ in range(8):
        out_ = 2*min(5, 7 - s_) if s_ < 2 else 2*(7 - s_)
        a(f"s_waitcnt lgkmcnt({out_})\nv_mfma_f32_16x16x32_bf16 {v(acc,4)}, {v(fa+4*s_,4)}, {v(fb+4*s_,4)}, {v(acc,4)}")
        if s_ + 6 < 8: rd(s_ + 6)
    a(f"v_cvt_pk_bf16_f32 {v(t0)}, {v(acc)}, {v(acc+1)}\nv_cvt_pk_bf16_f32 {v(t1)}, {v(acc+2)}, {v(acc+3)}")
    a(f"ds_write_b32 {v(vKT0)}, {v(t0)}\nds_write_b32 {v(vKT1)}, {v(t1)}")
    a.label("L_nokt")
    R.release(mk)
    a("s_waitcnt lgkmcnt(0)\ns_barrier")
    stamp("ktab")
    mk = R.mark()
    g = R.get(16); dd = R.get(8, 2); ee = R.get(6, 2); ss = R.get(6, 2); ff = R.get(6, 2); zz = R.get(4, 2)
    for k in range(16):
        a(f"ds_read_u16 {v(g+k)}, {v(vGA+k)}")
        if k == 11: a("s_waitcnt lgkmcnt(8)")
    for k in range(4): a(f"v_mov_b32 {v(zz+k)}, 0")
    a("s_waitcnt lgkmcnt(0)")
    for p in range(8): a(f"v_lshl_or_b32 {v(dd+p)}, {v(g+2*p+1)}, 16, {v(g+2*p)}")
    for p in range(6): a(f"v_lshl_or_b32 {v(ee+p)}, {v(g+2*p+3)}, 16, {v(g+2*p+2)}")
    for p in range(6): a(f"v_lshl_or_b32 {v(ss+p)}, {v(g+2*p+2)}, 16, {v(g+2*p+1)}")
    for p in range(6): a(f"v_lshl_or_b32 {v(ff+p)}, {v(g+2*p+4)}, 16, {v(g+2*p+3)}")
    src = {7: dd, 5: ee, 3: dd+2, 1: ee+2, 6: ss, 4: ff, 2: ss+2, 0: ff+2}
    for c in (7, 3, 5, 1, 6, 2, 4, 0):
        a(f"ds_write_b128 {v(vKCw)}, {v(src[c],4)} offset:{CB(c)}")
    a(f"s_and_b32 s68, {sW}, 3\ns_cmp_lg_u32 s68, 0\ns_cbranch_scc1 L_nozc")
    a(f"v_and_b32 {v(t0)}, 3, {v(lane)}\nv_lshlrev_b32 {v(t0)}, 2, {v(t0)}\nv_bfe_u32 {v(t1)}, {v(lane)}, 2, 1\nv_lshl_add_u32 {v(t0)}, {v(t1)}, 1, {v(t0)}")
    a(f"v_and_b32 {v(t1)}, 7, {v(lane)}\nv_mul_u32_u24 {v(t1)}, 272, {v(t1)}\nv_add_u32 {v(t0)}, {v(t0)}, {v(t1)}\nv_lshlrev_b32 {v(t0)}, 4, {v(t0)}")
    a(f"s_lshr_b32 s68, {sW}, 2\ns_mul_i32 s68, s68, {CHS}\ns_add_u32 s68, s68, 4096\nv_add_u32 {v(t0)}, s68, {v(t0)}")
    a(f"s_mov_b64 exec, 255\nds_write_b128 {v(t0)}, {v(zz,4)}\ns_mov_b64 exec, -1")
    a.label("L_nozc")
    R.release(mk)
    stamp("kcopy")
    a("s_mov_b32 s68, 0")
    a.label("L_xpoll")
    a("s_waitcnt vmcnt(0)")
    a(f"v_cmp_ne_u32 vcc, {sNON}, {v(vXA+3)}\nv_cmp_ne_u32 s[78:79], {sNON}, {v(vXB_+3)}\ns_or_b64 vcc, vcc, s[78:79]")
    a(f"v_cmp_ne_u32 s[78:79], {sNON}, {v(vSA+3)}\ns_or_b64 vcc, vcc, s[78:79]\nv_cmp_ne_u32 s[78:79], {sNON}, {v(vSB_+3)}\ns_or_b64 vcc, vcc, s[78:79]")
    a(f"s_cmp_eq_u64 vcc, 0\ns_cbranch_scc1 L_xok\ns_add_u32 s68, s68, 1\ns_cmp_ge_u32 s68, 100000\ns_cbranch_scc1 L_xok")
    xchg_loads()
    a("s_branch L_xpoll")
    a.label("L_xok")
    stamp("xvalid")
    vUw = R.get(); vU = R.get(4)
    vKey = R.get(2, 2)
    mk = R.mark()
    xf = R.get(8); mm = R.get(4); rs = R.get(4); pk = R.get(4); key = R.get(4)
    a(f"v_lshlrev_b32 {v(vUw)}, 2, v0\nv_add_u32 {v(vUw)}, {L_U + 512}, {v(vUw)}")
    toks = [(vXA, vSA, 0), (vXA+1, vSA+1, 1), (vXB_, vSB_, 2), (vXB_+1, vSB_+1, 3)]
    for x_, s_, k in toks:
        a(f"v_lshlrev_b32 {v(mm+k)}, 16, {v(s_)}\nv_and_b32 {v(rs+k)}, 0xffff0000, {v(s_)}\nv_rcp_f32 {v(rs+k)}, {v(rs+k)}")
        a(f"v_lshlrev_b32 {v(xf+2*k)}, 16, {v(x_)}\nv_and_b32 {v(xf+2*k+1)}, 0xffff0000, {v(x_)}")
    for x_, s_, k in toks:
        a(f"v_sub_f32 {v(xf+2*k)}, {v(xf+2*k)}, {v(mm+k)}\nv_sub_f32 {v(xf+2*k+1)}, {v(xf+2*k+1)}, {v(mm+k)}\nv_cvt_pk_bf16_f32 {v(pk+k)}, {v(xf+2*k)}, {v(xf+2*k+1)}")
    for x_, s_, k in toks:
        a(f"v_lshlrev_b32 {v(xf+2*k)}, 16, {v(pk+k)}\nv_and_b32 {v(xf+2*k+1)}, 0xffff0000, {v(pk+k)}")
        a(f"v_mul_f32 {v(xf+2*k)}, {v(xf+2*k)}, {v(rs+k)}\nv_mul_f32 {v(xf+2*k+1)}, {v(xf+2*k+1)}, {v(rs+k)}")
    for u_ in range(2):
        for ch in range(2):
            a(f"v_cvt_pk_bf16_f32 {v(vU+2*u_+ch)}, {v(xf+4*u_+ch)}, {v(xf+4*u_+2+ch)}")
            a(f"ds_write_b32 {v(vUw)}, {v(vU+2*u_+ch)} offset:{ch*L_UCH + u_*2048}")
    a(f"v_lshlrev_b32 {v(t0)}, 3, v0\nv_add_u32 {v(t0)}, {L_STAT}, {v(t0)}\nds_write_b64 {v(t0)}, {v(vSA,2)}\nds_write_b64 {v(t0)}, {v(vSB_,2)} offset:4096")
    a(f"v_lshlrev_b32 {v(t1)}, 1, v0\nv_sub_u32 {v(t1)}, 0xffff, {v(t1)}")
    for k, (src_, hi) in enumerate(((vSA+2, 0), (vSA+2, 1), (vSB_+2, 0), (vSB_+2, 1))):
        if hi: a(f"v_and_b32 {v(t2)}, 0xffff0000, {v(src_)}")
        else:  a(f"v_lshlrev_b32 {v(t2)}, 16, {v(src_)}")
        a(f"v_ashrrev_i32 {v(t3)}, 31, {v(t2)}\nv_or_b32 {v(t3)}, 0x80000000, {v(t3)}\nv_xor_b32 {v(t2)}, {v(t2)}, {v(t3)}\nv_and_b32 {v(t2)}, 0xffff0000, {v(t2)}")
        a(f"v_subrev_u32 {v(t3)}, {(k & 1) + 1024*(k >> 1)}, {v(t1)}\nv_or_b32 {v(key+k)}, {v(t2)}, {v(t3)}")
    k1, k2 = vKey, vKey + 1
    a(f"v_max_u32 {v(k1)}, {v(key)}, {v(key+1)}\nv_min_u32 {v(k2)}, {v(key)}, {v(key+1)}")
    a(f"v_max_u32 {v(t2)}, {v(key+2)}, {v(key+3)}\nv_min_u32 {v(t3)}, {v(key+2)}, {v(key+3)}")
    def merge(b1, b2):
        a(f"v_max_u32 {v(k2)}, {v(k2)}, {v(b2)}\nv_med3_u32 {v(k2)}, {v(k1)}, {v(b1)}, {v(k2)}\nv_max_u32 {v(k1)}, {v(k1)}, {v(b1)}")
    merge(t2, t3)
    for ctl in ("row_shr:1", "row_shr:2", "row_shr:4", "row_shr:8"):
        a(f"v_mov_b32_dpp {v(t2)}, {v(k1)} {ctl} row_mask:0xf bank_mask:0xf bound_ctrl:0\nv_mov_b32_dpp {v(t3)}, {v(k2)} {ctl} row_mask:0xf bank_mask:0xf bound_ctrl:0")
        merge(t2, t3)
    for ctl in ("row_bcast:15 row_mask:0xa", "row_bcast:31 row_mask:0xc"):
        a(f"v_mov_b32 {v(t2)}, 0\nv_mov_b32 {v(t3)}, 0")
        a(f"v_mov_b32_dpp {v(t2)}, {v(k1)} {ctl} bank_mask:0xf\nv_mov_b32_dpp {v(t3)}, {v(k2)} {ctl} bank_mask:0xf")
        merge(t2, t3)
    a(f"s_lshl_b32 s68, {sW}, 3\ns_add_u32 s68, s68, {M_CAND}\nv_mov_b32 {v(t0)}, s68")
    a(f"s_mov_b32 exec_lo, 0\ns_mov_b32 exec_hi, 0x80000000\nds_write_b64 {v(t0)}, {v(k1,2) if k1 % 2 == 0 else v(k1,2)}\ns_mov_b64 exec, -1")
    R.release(mk)
    vA = R.get(); vB = R.get(); vYw = R.get(); vYr = R.get(); vO = R.get()
    a(f"s_and_b32 s68, {sW}, 1\ns_bfe_u32 s69, {sW}, 0x10001")
    a(f"v_and_b32 {v(t0)}, 7, {v(vM)}\nv_mul_u32_u24 {v(t1)}, 272, {v(t0)}\nv_and_b32 {v(t2)}, 3, {v(vM)}\nv_lshl_add_u32 {v(t1)}, {v(t2)}, 2, {v(t1)}")
    a(f"v_bfe_u32 {v(t2)}, {v(vM)}, 2, 1\nv_lshl_add_u32 {v(t1)}, {v(t2)}, 1, {v(t1)}\nv_add_u32 {v(t1)}, {v(t1)}, {v(vQ)}\nv_lshrrev_b32 {v(t2)}, 3, {v(vM)}\nv_sub_u32 {v(t1)}, {v(t1)}, {v(t2)}")
    a(f"s_mul_i32 s78, s69, {CHS}\ns_lshl_b32 s79, s68, 8\ns_sub_u32 s78, s78, s79\ns_add_u32 s78, s78, {464 - 192}\nv_lshl_add_u32 {v(vA)}, {v(t1)}, 4, s78")
    a(f"s_mul_i32 s78, s69, {L_UCH}\ns_sub_u32 s78, s78, s79\ns_add_u32 s78, s78, {L_U + 480 - 192}")
    a(f"v_lshlrev_b32 {v(t1)}, 5, {v(vM)}\nv_lshl_add_u32 {v(t1)}, {v(vQ)}, 4, {v(t1)}\nv_add_u32 {v(vB)}, s78, {v(t1)}")
    a(f"v_lshrrev_b32 {v(t1)}, 1, {v(vM)}\nv_add_u32 {v(t1)}, {v(t1)}, {v(vQ)}\nv_and_b32 {v(t1)}, 3, {v(t1)}\nv_lshlrev_b32 {v(t1)}, 4, {v(t1)}\nv_lshl_add_u32 {v(t1)}, {v(vM)}, 6, {v(t1)}")
    a(f"s_and_b32 s78, {sW}, 3\ns_lshl_b32 s78, s78, 13\ns_add_u32 s78, s78, {L_YP}\nv_add_u32 {v(vYw)}, s78, {v(t1)}")
    a(f"v_bfe_u32 {v(t0)}, v0, 3, 4\nv_bfe_u32 {v(t1)}, v0, 1, 2\nv_lshrrev_b32 {v(t2)}, 1, {v(t0)}\nv_add_u32 {v(t1)}, {v(t1)}, {v(t2)}\nv_and_b32 {v(t1)}, 3, {v(t1)}")
    a(f"v_lshlrev_b32 {v(t1)}, 4, {v(t1)}\nv_lshl_add_u32 {v(t1)}, {v(t0)}, 6, {v(t1)}\nv_lshrrev_b32 {v(t2)}, 7, v0\nv_lshl_add_u32 {v(t1)}, {v(t2)}, 10, {v(t1)}")
    a(f"v_and_b32 {v(t2)}, 1, v0\nv_lshl_add_u32 {v(t1)}, {v(t2)}, 3, {v(t1)}\nv_add_u32 {v(vYr)}, {L_YP}, {v(t1)}")
    a(f"v_lshlrev_b32 {v(vO)}, 11, v0")
    a("s_waitcnt lgkmcnt(0)\ns_barrier")
    stamp("ufill")
    a(f"s_cmp_ge_u32 {sW}, 4\ns_cbranch_scc1 L_helper")
    mk = R.mark()
    NA = 6
    acc = R.get(32, 4); bufB = [R.get(32, 4), R.get(32, 4)]; bufA = R.get(4*NA, 4)
    for k in range(32): a(f"v_mov_b32 {v(acc+k)}, 0")
    ops = []; reads = []
    for ki in range(4):
        for dl in range(7, -1, -1):
            for i in range(0, 8 - dl):
                ops.append((i + dl, ("A", ki, dl), ("B", ki, i)))
    first = {}; last = {}
    for t_, (_, ka, kb) in enumerate(ops):
        for k_ in (ka, kb):
            first.setdefault(k_, t_); last[k_] = t_
    order = sorted(first, key=lambda k_: (first[k_], k_[0] == "B"))
    reg = {}; prev = {}
    na = 0; occA = [None]*NA
    for k_ in order:
        if k_[0] == "A":
            slot = na % NA; na += 1
            reg[k_] = bufA + 4*slot; prev[k_] = occA[slot]; occA[slot] = k_
        else:
            reg[k_] = bufB[k_[1] & 1] + 4*k_[2]
            prev[k_] = ("B", k_[1]-2, k_[2]) if k_[1] >= 2 else None
    def addr(k_):
        if k_[0] == "A": return f"{v(vA)} offset:{512*(7-k_[2]) + 64*(3-k_[1])}"
        return f"{v(vB)} offset:{512*k_[2] + 64*(3-k_[1])}"
    issued = []; nxt = 0; waited = -1
    def issue(k_):
        a(f"ds_read_b128 {v(reg[k_],4)}, {addr(k_)}"); issued.append(k_)
    LOOK = 12
    for t_, (j, ka, kb) in enumerate(ops):
        budget = 2
        while nxt < len(order):
            k_ = order[nxt]
            must = first[k_] <= t_
            free = prev[k_] is None or last[prev[k_]] < t_
            if must or (free and budget > 0 and first[k_] <= t_ + LOOK and len(issued) - 1 - waited < 13):
                assert free
                issue(k_); nxt += 1; budget -= 1
            else: break
        need_ = max(issued.index(ka), issued.index(kb))
        if need_ > waited:
            a(f"s_waitcnt lgkmcnt({len(issued) - 1 - need_})"); waited = need_
        a(f"v_mfma_f32_16x16x32_bf16 {v(acc+4*j,4)}, {v(reg[ka],4)}, {v(reg[kb],4)}, {v(acc+4*j,4)}")
    stamp("conv")
    for i in range(8): a(f"ds_write_b128 {v(vYw)}, {v(acc+4*i,4)} offset:{1024*i}")
    R.release(mk)
    a("s_branch L_epi")
    a.label("L_helper")
    mk = R.mark()
    c1 = R.get(2, 2); xs = R.get(2, 2); msr = R.get(); xf4 = R.get(4)
    a(f"v_lshlrev_b32 {v(t0)}, 3, {v(lane)}\nv_add_u32 {v(t0)}, {M_CAND}, {v(t0)}\nv_mov_b32 {v(c1)}, 0\nv_mov_b32 {v(c1+1)}, 0")
    a(f"s_mov_b64 exec, 255\nds_read_b64 {v(c1,2)}, {v(t0)}\ns_mov_b64 exec, -1\ns_waitcnt lgkmcnt(0)")
    k1, k2 = c1, c1 + 1
    for ctl in ("row_shr:1", "row_shr:2", "row_shr:4"):
        a(f"v_mov_b32_dpp {v(t2)}, {v(k1)} {ctl} row_mask:0xf bank_mask:0xf bound_ctrl:0\nv_mov_b32_dpp {v(t3)}, {v(k2)} {ctl} row_mask:0xf bank_mask:0xf bound_ctrl:0")
        a(f"v_max_u32 {v(k2)}, {v(k2)}, {v(t3)}\nv_med3_u32 {v(k2)}, {v(k1)}, {v(t2)}, {v(k2)}\nv_max_u32 {v(k1)}, {v(k1)}, {v(t2)}")
    a(f"v_readlane_b32 s84, {v(k1)}, 7\nv_readlane_b32 s85, {v(k2)}, 7")
    a("s_and_b32 s86, s84, 0xffff\ns_sub_u32 s86, 0xffff, s86\ns_and_b32 s87, s85, 0xffff\ns_sub_u32 s87, 0xffff, s87")
    a(f"s_cmp_lg_u32 {sW}, 4\ns_cbranch_scc1 L_notop")
    tp = R.get(4, 2)
    a(f"v_mov_b32 {v(tp)}, s86\nv_mov_b32 {v(tp+1)}, s87\nv_mov_b32 {v(tp+2)}, s84\nv_mov_b32 {v(tp+3)}, s85\nv_mov_b32 {v(t0)}, {M_TOP}")
    a(f"s_mov_b64 exec, 1\nds_write_b128 {v(t0)}, {v(tp,4)}\ns_mov_b64 exec, -1")
    a.label("L_notop")
    a(f"s_cmp_ge_u32 {sY}, 14\ns_cbranch_scc1 L_epi")
    a(f"v_lshrrev_b32 {v(t0)}, 5, {v(lane)}\nv_cmp_eq_u32 vcc, 0, {v(t0)}\nv_mov_b32 {v(t1)}, s87\nv_mov_b32 {v(t2)}, s86\nv_cndmask_b32 {v(t1)}, {v(t1)}, {v(t2)}, vcc")
    a(f"v_and_b32 {v(t2)}, 31, {v(lane)}\nv_lshlrev_b32 {v(t2)}, 3, {v(t2)}\nv_lshl_add_u32 {v(t3)}, {v(t1)}, 10, {v(t2)}\ns_lshl_b32 s68, s82, 8")
    a(f"buffer_load_dwordx2 {v(xs,2)}, {v(t3)}, {sX}, s68 offen")
    a(f"v_lshlrev_b32 {v(t1)}, 2, {v(t1)}\nv_add_u32 {v(t1)}, {L_STAT}, {v(t1)}\nds_read_b32 {v(msr)}, {v(t1)}")
    vXSw = R.get(); vXSr = R.get(); vTR = R.get()
    a(f"s_lshl_b32 s69, s82, 9\ns_add_u32 s69, s69, {L_XS}")
    a(f"v_lshl_add_u32 {v(vXSw)}, {v(t0)}, 8, {v(t2)}\nv_add_u32 {v(vXSw)}, s69, {v(vXSw)}")
    a(f"v_and_b32 {v(t0)}, 1, {v(vM)}\nv_lshlrev_b32 {v(t0)}, 8, {v(t0)}\nv_lshl_add_u32 {v(t0)}, {v(vQ)}, 3, {v(t0)}\nv_add_u32 {v(vXSr)}, s69, {v(t0)}")
    a(f"s_lshl_b32 s69, s82, 12\ns_add_u32 s69, s69, {L_MW}\nv_lshl_add_u32 {v(vTR)}, {v(lane)}, 3, s69")
    wp = R.get(16)
    a("s_mov_b32 s78, 0x05040100\ns_mov_b32 s79, 0x07060302")
    for p in range(8):
        a(f"v_perm_b32 {v(wp+2*p)}, {v(vWD+2*p+1)}, {v(vWD+2*p)}, s78\nv_perm_b32 {v(wp+2*p+1)}, {v(vWD+2*p+1)}, {v(vWD+2*p)}, s79")
    fbg = R.get(16, 2); fbu = R.get(16, 2); fa_ = R.get(16, 2); aG = R.get(4, 4); aU = R.get(4, 4)
    for s_ in range(4):
        for h in range(2):
            a(f"ds_read_b64_tr_b16 {v(fbg+4*s_+2*h,2)}, {v(vTR)} offset:{1024*s_ + 512*h}")
    for k in range(4): a(f"v_mov_b32 {v(aG+k)}, 0\nv_mov_b32 {v(aU+k)}, 0")
    a("s_waitcnt lgkmcnt(4)")
    for s_ in range(4):
        for h in range(2):
            a(f"ds_read_b64_tr_b16 {v(fbu+4*s_+2*h,2)}, {v(vTR)} offset:{16384 + 1024*s_ + 512*h}")
    a(f"s_waitcnt vmcnt(0) lgkmcnt(8)")
    a(f"v_lshlrev_b32 {v(t0)}, 16, {v(msr)}\nv_and_b32 {v(t1)}, 0xffff0000, {v(msr)}\nv_rcp_f32 {v(t1)}, {v(t1)}")
    for k in range(2): a(f"v_lshlrev_b32 {v(xf4+2*k)}, 16, {v(xs+k)}\nv_and_b32 {v(xf4+2*k+1)}, 0xffff0000, {v(xs+k)}")
    for k in range(4): a(f"v_sub_f32 {v(xf4+k)}, {v(xf4+k)}, {v(t0)}")
    for k in range(2): a(f"v_cvt_pk_bf16_f32 {v(xs+k)}, {v(xf4+2*k)}, {v(xf4+2*k+1)}")
    for k in range(2): a(f"v_lshlrev_b32 {v(xf4+2*k)}, 16, {v(xs+k)}\nv_and_b32 {v(xf4+2*k+1)}, 0xffff0000, {v(xs+k)}")
    for k in range(4): a(f"v_mul_f32 {v(xf4+k)}, {v(xf4+k)}, {v(t1)}")
    for k in range(2): a(f"v_cvt_pk_bf16_f32 {v(xs+k)}, {v(xf4+2*k)}, {v(xf4+2*k+1)}")
    a(f"ds_write_b64 {v(vXSw)}, {v(xs,2)}")
    for s_ in range(4):
        for h in range(2):
            a(f"ds_read_b64 {v(fa_+4*s_+2*h,2)}, {v(vXSr)} offset:{64*s_ + 32*h}")
            if s_ == 1 and h == 1: a("s_waitcnt lgkmcnt(4)")
    for s_ in range(4):
        a(f"s_waitcnt lgkmcnt({6 - 2*s_ if s_ >= 2 else 4})" if False else "")
    a("s_waitcnt lgkmcnt(0)")
    for s_ in range(4):
        a(f"v_mfma_f32_16x16x32_bf16 {v(aG,4)}, {v(fa_+4*s_,4)}, {v(fbg+4*s_,4)}, {v(aG,4)}")
        a(f"v_mfma_f32_16x16x32_bf16 {v(aU,4)}, {v(fa_+4*s_,4)}, {v(fbu+4*s_,4)}, {v(aU,4)}")
    a(f"v_cmp_eq_u32 vcc, 0, {v(vQ)}\nv_cndmask_b32 {v(t0)}, {v(aG+1)}, {v(aG)}, vcc")
    a(f"v_cmp_eq_u32 vcc, 2, {v(vQ)}\nv_cndmask_b32 {v(t1)}, {v(aU+1)}, {v(aU)}, vcc")
    a(f"v_cmp_gt_u32 vcc, 2, {v(vQ)}\nv_cndmask_b32 {v(t0)}, {v(t1)}, {v(t0)}, vcc")
    a(f"s_lshl_b32 s69, s82, 8\ns_add_u32 s69, s69, {L_PART}\nv_lshl_add_u32 {v(t1)}, {v(lane)}, 2, s69\nds_write_b32 {v(t1)}, {v(t0)}")
    a(f"v_mov_b32 {v(t2)}, {M_CNT}\nv_mov_b32 {v(t3)}, 1\ns_mov_b64 exec, 1\nds_add_u32 {v(t2)}, {v(t3)}\ns_mov_b64 exec, -1\ns_mov_b32 s69, 0")
    a.label("L_hspin")
    a(f"ds_read_b32 {v(t3)}, {v(t2)}\ns_waitcnt lgkmcnt(0)\nv_readfirstlane_b32 s68, {v(t3)}\ns_add_u32 s69, s69, 1\ns_cmp_ge_u32 s68, 4\ns_cbranch_scc1 L_hgo\ns_cmp_lt_u32 s69, 1000000\ns_cbranch_scc1 L_hspin")
    a.label("L_hgo")
    pr = R.get(4)
    a(f"v_lshlrev_b32 {v(t1)}, 2, {v(lane)}\nv_add_u32 {v(t1)}, {L_PART}, {v(t1)}")
    for j in range(4): a(f"ds_read_b32 {v(pr+j)}, {v(t1)} offset:{256*j}")
    a(f"s_waitcnt lgkmcnt(0)\nv_add_f32 {v(pr)}, {v(pr)}, {v(pr+1)}\nv_add_f32 {v(pr+2)}, {v(pr+2)}, {v(pr+3)}\nv_add_f32 {v(pr)}, {v(pr)}, {v(pr+2)}")
    a(f"v_cvt_pk_bf16_f32 {v(pr)}, {v(pr)}, {v(pr)}\nv_and_b32 {v(pr)}, 0xffff0000, {v(pr)}\nv_mov_b32 {v(pr+1)}, {v(pr)}")
    a(f"v_permlane32_swap_b32 {v(pr)}, {v(pr+1)}")
    a(f"v_mul_f32 {v(t0)}, 0xbfb8aa3b, {v(pr)}\nv_exp_f32 {v(t0)}, {v(t0)}\nv_add_f32 {v(t0)}, 1.0, {v(t0)}\nv_rcp_f32 {v(t0)}, {v(t0)}\nv_mul_f32 {v(t0)}, {v(t0)}, {v(pr)}")
    a(f"v_cvt_pk_bf16_f32 {v(t0)}, {v(t0)}, {v(t0)}\nv_and_b32 {v(t0)}, 0xffff0000, {v(t0)}\nv_mul_f32 {v(t0)}, {v(t0)}, {v(pr+1)}\nv_cvt_pk_bf16_f32 {v(t0)}, {v(t0)}, {v(t0)}\nv_and_b32 {v(t0)}, 0xffff, {v(t0)}")
    a(f"v_mov_b32_dpp {v(t1)}, {v(t0)} quad_perm:[1,0,3,2] row_mask:0xf bank_mask:0xf bound_ctrl:0\nv_lshl_or_b32 {v(t0)}, {v(t1)}, 16, {v(t0)}")
    pa = R.get(8, 2)
    first_ = True
    for p in range(8):
        for tok in range(2):
            sr = 88 + tok
            a(f"v_readlane_b32 s{sr}, {v(t0)}, {16*tok + 2*p}")
        for tok in range(2):
            for ch in range(2):
                dst = pa + (0, 1, 2, 4)[2*tok + ch]
                if p == 0: a(f"v_mov_b32 {v(dst)}, 0")
                a(f"v_dot2_f32_bf16 {v(dst)}, s{88+tok}, {v(wp+2*p+ch)}, {v(dst)}")
    a(f"v_mov_b32 {v(pa+3)}, {sNON}\nv_mov_b32 {v(pa+5)}, 0\nv_mov_b32 {v(pa+6)}, 0\nv_mov_b32 {v(pa+7)}, {sNON}")
    a(f"v_and_b32 {v(t1)}, 255, v0\nv_lshlrev_b32 {v(t1)}, 5, {v(t1)}\ns_lshl_b32 s68, s81, 13\ns_add_u32 s68, s68, {WS_PB}")
    a(f"buffer_store_dwordx4 {v(pa,4)}, {v(t1)}, {sWS}, s68 offen sc1\nbuffer_store_dwordx4 {v(pa+4,4)}, {v(t1)}, {sWS}, s68 offen offset:16 sc1")
    R.release(mk)
    stamp("moe")
    a.label("L_epi")
    a("s_waitcnt lgkmcnt(0)\ns_barrier")
    stamp("ybar")
    mk = R.mark()
    yp = R.get(16, 2); yb = R.get(8); xn = R.get(8); xx = R.get(8); dk = R.get(2); o = R.get(4)
    for u_ in range(2):
        for ch in range(2):
            for h in range(2):
                a(f"ds_read_b64 {v(yp + 8*u_ + 4*ch + 2*h, 2)}, {v(vYr)} offset:{8192*(2*ch+h) + 4096*u_}")
    tp = R.get(4, 2); t1p = R.get(4); se = R.get(2, 2); vOj = R.get(4)
    a(f"v_mov_b32 {v(t0)}, {M_TOP}\nds_read_b128 {v(tp,4)}, {v(t0)}")
    a(f"s_lshl_b32 s68, {sDSK}, 16\ns_and_b32 s69, {sDSK}, 0xffff0000")
    for u_ in range(2):
        for ch in range(2):
            k = 4*u_ + 2*ch
            a(f"v_lshlrev_b32 {v(xn+k)}, 16, {v(vU+2*u_+ch)}\nv_and_b32 {v(xn+k+1)}, 0xffff0000, {v(vU+2*u_+ch)}")
        xs = (vXA, vXB_)[u_]
        for tok in range(2):
            a(f"v_lshlrev_b32 {v(xx+4*u_+tok)}, 16, {v(xs+tok)}\nv_and_b32 {v(xx+4*u_+2+tok)}, 0xffff0000, {v(xs+tok)}")
    a("s_waitcnt lgkmcnt(0)")
    for u_ in range(2):
        for ch in range(2):
            k = 4*u_ + 2*ch; y0 = yp + 8*u_ + 4*ch
            a(f"v_add_f32 {v(y0)}, {v(y0)}, {v(y0+2)}\nv_add_f32 {v(y0+1)}, {v(y0+1)}, {v(y0+3)}")
            a(f"v_cvt_pk_bf16_f32 {v(y0)}, {v(y0)}, {v(y0+1)}")
            a(f"v_mul_f32 {v(yb+k)}, s{68+ch}, {v(xn+k)}\nv_mul_f32 {v(yb+k+1)}, s{68+ch}, {v(xn+k+1)}")
            a(f"v_cvt_pk_bf16_f32 {v(y0+1)}, {v(yb+k)}, {v(yb+k+1)}")
            a(f"v_lshlrev_b32 {v(yb+k)}, 16, {v(y0)}\nv_and_b32 {v(yb+k+1)}, 0xffff0000, {v(y0)}")
            a(f"v_lshlrev_b32 {v(y0+2)}, 16, {v(y0+1)}\nv_and_b32 {v(y0+3)}, 0xffff0000, {v(y0+1)}")
            a(f"v_add_f32 {v(yb+k)}, {v(yb+k)}, {v(y0+2)}\nv_add_f32 {v(yb+k+1)}, {v(yb+k+1)}, {v(y0+3)}")
            a(f"v_cvt_pk_bf16_f32 {v(y0)}, {v(yb+k)}, {v(yb+k+1)}")
            a(f"v_lshlrev_b32 {v(yb+k)}, 16, {v(y0)}\nv_and_b32 {v(yb+k+1)}, 0xffff0000, {v(y0)}")
            a(f"v_add_f32 {v(yb+k)}, {v(yb+k)}, {v(xx+k)}\nv_add_f32 {v(yb+k+1)}, {v(yb+k+1)}, {v(xx+k+1)}")
            a(f"v_cvt_pk_bf16_f32 {v(y0)}, {v(yb+k)}, {v(yb+k+1)}")
            a(f"v_lshlrev_b32 {v(yb+k)}, 16, {v(y0)}\nv_and_b32 {v(yb+k+1)}, 0xffff0000, {v(y0)}")
            a(f"v_add_f32 {v(xx+k)}, {v(yb+k)}, {v(xn+k)}\nv_add_f32 {v(xx+k+1)}, {v(yb+k+1)}, {v(xn+k+1)}")
    a(f"v_readfirstlane_b32 s86, {v(tp)}\nv_readfirstlane_b32 s87, {v(tp+1)}\nv_readfirstlane_b32 s84, {v(tp+2)}\nv_readfirstlane_b32 s85, {v(tp+3)}")
    for u_ in range(2):
        for tok in range(2):
            a(f"v_cvt_pk_bf16_f32 {v(o+2*u_+tok)}, {v(xx+4*u_+tok)}, {v(xx+4*u_+2+tok)}")
    a(f"s_lshl_b32 s68, {sCP}, 2\ns_add_u32 s69, s68, 0x100000")
    a(f"v_lshlrev_b32 {v(t0)}, 1, v0\nv_mov_b32 {v(t3)}, 0x7ff00000")
    for u_ in range(2):
        for tok in range(2):
            j = 2*u_ + tok
            a(f"v_add_u32 {v(t1)}, {1024*u_ + tok}, {v(t0)}\nv_cmp_eq_u32 vcc, s86, {v(t1)}\nv_cmp_eq_u32 s[78:79], s87, {v(t1)}\ns_or_b64 vcc, vcc, s[78:79]\nv_cndmask_b32 {v(vOj+j)}, {v(vO)}, {v(t3)}, vcc")
    for u_ in range(2):
        for tok in range(2):
            a(f"buffer_store_dword {v(o+2*u_+tok)}, {v(vOj+2*u_+tok)}, {sOUT}, s{68+u_} offen offset:{1024*tok}")
    stamp("epi")
    a(f"s_mov_b32 s78, 0x05040100\ns_mov_b32 s79, 0x07060302\nv_lshlrev_b32 {v(t0)}, 4, v0")
    for u_ in range(2):
        for tok in range(2):
            a(f"v_cvt_pk_bf16_f32 {v(se)}, {v(yb+4*u_+tok)}, {v(yb+4*u_+2+tok)}\nv_perm_b32 {v(se+1)}, {v(vU+2*u_+1)}, {v(vU+2*u_)}, s{78+tok}")
            a(f"ds_write_b64 {v(t0)}, {v(se,2)} offset:{L_SEL + 8192*u_ + 8*tok}")
    R.release(mk)
    a("s_waitcnt lgkmcnt(0)\ns_barrier")
    a(f"s_cmp_lg_u32 {sW}, 4\ns_cbranch_scc1 L_fin")
    mk = R.mark()
    pl = R.get(16, 2); vP0 = R.get(); vP1 = R.get(); sm = R.get(4); sel = R.get(2, 2)
    a(f"v_lshlrev_b32 {v(vP0)}, 13, {v(lane)}\nv_add_u32 {v(vP1)}, 0x80000, {v(vP0)}\nv_cmp_gt_u32 vcc, {NPROD - 64}, {v(lane)}\nv_mov_b32 {v(t0)}, 0x7ff00000\nv_cndmask_b32 {v(vP1)}, {v(t0)}, {v(vP1)}, vcc")
    a(f"s_mov_b64 s[90:91], vcc\ns_lshl_b32 s68, {sCP}, 5\ns_add_u32 s68, s68, {WS_PB}\ns_mov_b32 s69, 0")
    a(f"v_cmp_eq_u32 vcc, 0, {v(lane)}\nv_mov_b32 {v(t1)}, s87\nv_mov_b32 {v(t2)}, s86\nv_cndmask_b32 {v(t1)}, {v(t1)}, {v(t2)}, vcc")
    a(f"v_mov_b32 {v(t2)}, s85\nv_mov_b32 {v(t3)}, s84\nv_cndmask_b32 {v(t2)}, {v(t2)}, {v(t3)}, vcc")
    a(f"v_lshlrev_b32 {v(t3)}, 3, {v(t1)}\nds_read_b64 {v(sel,2)}, {v(t3)} offset:{L_SEL}")
    a.label("L_ppoll")
    a(f"buffer_load_dwordx4 {v(pl,4)}, {v(vP0)}, {sWS}, s68 offen sc1\nbuffer_load_dwordx4 {v(pl+4,4)}, {v(vP0)}, {sWS}, s68 offen offset:16 sc1")
    a(f"buffer_load_dwordx4 {v(pl+8,4)}, {v(vP1)}, {sWS}, s68 offen sc1\nbuffer_load_dwordx4 {v(pl+12,4)}, {v(vP1)}, {sWS}, s68 offen offset:16 sc1")
    a("s_waitcnt vmcnt(0)")
    a(f"v_cmp_ne_u32 vcc, {sNON}, {v(pl+11)}\nv_cmp_ne_u32 s[78:79], {sNON}, {v(pl+15)}\ns_or_b64 vcc, vcc, s[78:79]\ns_and_b64 vcc, vcc, s[90:91]")
    a(f"v_cmp_ne_u32 s[78:79], {sNON}, {v(pl+3)}\ns_or_b64 vcc, vcc, s[78:79]\nv_cmp_ne_u32 s[78:79], {sNON}, {v(pl+7)}\ns_or_b64 vcc, vcc, s[78:79]")
    a(f"s_cmp_eq_u64 vcc, 0\ns_cbranch_scc1 L_pok\ns_add_u32 s69, s69, 1\ns_cmp_lt_u32 s69, 100000\ns_cbranch_scc1 L_ppoll")
    a.label("L_pok")
    for k, (x0, x1) in enumerate(((pl, pl+8), (pl+1, pl+9), (pl+2, pl+10), (pl+4, pl+12))):
        a(f"v_add_f32 {v(sm+k)}, {v(x0)}, {v(x1)}")
    wave_reduce([sm, sm+1, sm+2, sm+3])
    a(f"v_readlane_b32 s92, {v(sm)}, 63\nv_readlane_b32 s93, {v(sm+1)}, 63\nv_readlane_b32 s94, {v(sm+2)}, 63\nv_readlane_b32 s95, {v(sm+3)}, 63")
    a(f"v_cmp_eq_u32 vcc, 0, {v(lane)}\nv_mov_b32 {v(sm)}, s94\nv_mov_b32 {v(sm+1)}, s95\nv_mov_b32 {v(sm+2)}, s92\nv_mov_b32 {v(sm+3)}, s93")
    a(f"v_cndmask_b32 {v(sm)}, {v(sm)}, {v(sm+2)}, vcc\nv_cndmask_b32 {v(sm+1)}, {v(sm+1)}, {v(sm+3)}, vcc")
    a(f"v_and_b32 {v(t2)}, 0xffff0000, {v(t2)}\nv_ashrrev_i32 {v(t3)}, 31, {v(t2)}\nv_not_b32 {v(t3)}, {v(t3)}\nv_or_b32 {v(t3)}, 0x80000000, {v(t3)}\nv_xor_b32 {v(t2)}, {v(t2)}, {v(t3)}\nv_and_b32 {v(t2)}, 0xffff0000, {v(t2)}")
    a(f"v_mul_f32 {v(t2)}, 0xbfb8aa3b, {v(t2)}\nv_exp_f32 {v(t2)}, {v(t2)}\nv_add_f32 {v(t2)}, 1.0, {v(t2)}\nv_rcp_f32 {v(t2)}, {v(t2)}\nv_cvt_pk_bf16_f32 {v(t2)}, {v(t2)}, {v(t2)}\nv_and_b32 {v(t2)}, 0xffff0000, {v(t2)}")
    a(f"v_cvt_pk_bf16_f32 {v(sm)}, {v(sm)}, {v(sm+1)}\nv_and_b32 {v(sm+1)}, 0xffff0000, {v(sm)}\nv_lshlrev_b32 {v(sm)}, 16, {v(sm)}")
    a(f"v_mul_f32 {v(sm)}, {v(sm)}, {v(t2)}\nv_mul_f32 {v(sm+1)}, {v(sm+1)}, {v(t2)}\nv_cvt_pk_bf16_f32 {v(sm)}, {v(sm)}, {v(sm+1)}")
    a(f"v_and_b32 {v(sm+1)}, 0xffff0000, {v(sm)}\nv_lshlrev_b32 {v(sm)}, 16, {v(sm)}\ns_waitcnt lgkmcnt(0)")
    a(f"v_lshlrev_b32 {v(sm+2)}, 16, {v(sel+1)}\nv_and_b32 {v(sm+3)}, 0xffff0000, {v(sel+1)}\nv_add_f32 {v(sm)}, {v(sm)}, {v(sm+2)}\nv_add_f32 {v(sm+1)}, {v(sm+1)}, {v(sm+3)}")
    a(f"v_cvt_pk_bf16_f32 {v(sm)}, {v(sm)}, {v(sm+1)}\nv_and_b32 {v(sm+1)}, 0xffff0000, {v(sm)}\nv_lshlrev_b32 {v(sm)}, 16, {v(sm)}")
    a(f"v_lshlrev_b32 {v(sm+2)}, 16, {v(sel)}\nv_and_b32 {v(sm+3)}, 0xffff0000, {v(sel)}\nv_add_f32 {v(sm)}, {v(sm)}, {v(sm+2)}\nv_add_f32 {v(sm+1)}, {v(sm+1)}, {v(sm+3)}")
    a(f"v_cvt_pk_bf16_f32 {v(sm)}, {v(sm)}, {v(sm+1)}\nv_lshlrev_b32 {v(t1)}, 10, {v(t1)}\ns_lshl_b32 s68, {sCP}, 2")
    a(f"s_mov_b64 exec, 3\nbuffer_store_dword {v(sm)}, {v(t1)}, {sOUT}, s68 offen\ns_mov_b64 exec, -1")
    R.release(mk)
    a.label("L_fin")
    stamp("fin")
    if debug_dump:
        a("s_waitcnt lgkmcnt(0)\ns_barrier")
        a(f"s_mul_i32 s68, s2, {LDS_BYTES}\ns_add_u32 s68, s68, {WS_DUMP}\nv_lshlrev_b32 {v(t0)}, 2, v0\ns_mov_b32 s69, 0")
        a.label("L_dump")
        a(f"ds_read_b32 {v(t1)}, {v(t0)}\ns_waitcnt lgkmcnt(0)\nbuffer_store_dword {v(t1)}, {v(t0)}, {sWS}, s68 offen")
        a(f"v_add_u32 {v(t0)}, 2048, {v(t0)}\ns_add_u32 s69, s69, 2048\ns_cmp_lt_u32 s69, {LDS_BYTES}\ns_cbranch_scc1 L_dump")
    if stamps:
        a("s_waitcnt vmcnt(0)")
        stamp("end")
        a(f"s_lshl_b32 s68, s2, 3\ns_add_u32 s68, s68, {sW}\ns_lshl_b32 s68, s68, 8\ns_add_u32 s68, s68, {WS_STAMP}")
        a(f"v_lshlrev_b32 {v(t0)}, 2, {v(lane)}\nbuffer_store_dword {v(vST)}, {v(t0)}, {sWS}, s68 offen")
    if dbgspan:
        a(f"s_cmp_lg_u32 {sW}, 4\ns_cbranch_scc1 L_end\ns_mul_i32 s68, s2, 3856\ns_lshr_b32 s68, s68, 16\ns_mul_i32 s69, s68, 17\ns_cmp_lg_u32 s69, s2\ns_cbranch_scc1 L_end")
        a("s_waitcnt vmcnt(0)\ns_memrealtime s[96:97]\ns_waitcnt lgkmcnt(0)")
        a(f"s_sub_u32 s96, s96, {sNON}\nv_mov_b32 {v(t0)}, s96\ns_lshl_b32 s68, s68, 2\ns_add_u32 s68, s68, 4\nv_mov_b32 {v(t2)}, s68")
        a(f"s_mov_b64 exec, 1\nbuffer_store_dword {v(t0)}, {v(t2)}, {sDBG}, 0 offen\ns_mov_b64 exec, -1")
    a.label("L_end")
    a("s_endpgm")
    body = a.finalize()
    nv = (R.hi + 7) // 8 * 8
    text = f"""; Fused LayerNorm + S4D convolution + top-2 MoE residual (one persistent workgroup per CU).
; @launch grid=(256,1,1) block=(512,1,1) lds={LDS_BYTES}
.amdgcn_target "amdgcn-amd-amdhsa--gfx950"
.text
.globl {KNAME}
.p2align 8
.type {KNAME},@function
{KNAME}:
{body}.section .rodata,"a"
.p2align 6
.amdhsa_kernel {KNAME}
  .amdhsa_next_free_vgpr {nv}
  .amdhsa_next_free_sgpr 102
  .amdhsa_accum_offset {nv}
  .amdhsa_group_segment_fixed_size 0
  .amdhsa_kernarg_size 120
  .amdhsa_user_sgpr_count 2
  .amdhsa_user_sgpr_kernarg_segment_ptr 1
  .amdhsa_system_sgpr_workgroup_id_x 1
.end_amdhsa_kernel
"""
    return text, stamp_slots, R.hi

if __name__ == "__main__":
    import argparse
    p = argparse.ArgumentParser()
    p.add_argument("-o", default="k.s"); p.add_argument("--dump", action="store_true"); p.add_argument("--stamps", action="store_true"); p.add_argument("--dbgspan", action="store_true")
    args = p.parse_args()
    text, slots, hi = gen(debug_dump=args.dump, stamps=args.stamps, dbgspan=args.dbgspan)
    open(args.o, "w").write(text)
    print("vgprs", hi, "stamps", slots, "lines", text.count("\n"))
```

```python
import sys, struct
import numpy as np
from asmlib import Asm

KNAME = "parallel_sum__ssm_conv_s4d__moe_arch_mod__prompt_kernel"

WS_XB = 0
WS_SB = 4 << 20
WS_PB = (4 << 20) + 65536
WS_STAMP = 200 << 20
WS_DUMP = 16 << 20

BLK    = 6144
L_PAD  = 1536
L_UD   = 2048
L_MISC = 12288
L_STAT = 13312
L_KEY  = 21504
L_GH   = 25600
CHS    = 34816
GHT    = 8704
GHROW  = 544
KCH    = 16640
KCS    = 4160
L_SEL  = L_GH + 33280
L_WD   = L_GH + 49664
L_YP   = L_GH + 2 * CHS
L_MW   = L_YP + 32768
L_MS   = L_MW + 32768
L_XS   = L_MS
L_PART = L_MS + 2048
LDS_BYTES = L_MS + 3072
M_NONCE, M_CP, M_CZ, M_CK, M_CC, M_CY1, M_CY2, M_C1, M_CNT, M_CS, M_CKEY, M_CW = [L_MISC + 4 * i for i in range(12)]
M_CW2 = L_MISC + 80
M_CSA = L_MISC + 84
M_CWT = L_MISC + 88
M_TOP = L_MISC + 48
M_CAND = L_MISC + 64
NPROD = 112
assert LDS_BYTES <= 163840

sX, sOUT, sWS, sLAR, sAIM, sCRE, sCIM, sWR, sWG, sWU, sWD, sDBG = [f"s[{i}:{i+3}]" for i in range(8, 56, 4)]
def srd_lo(s): return int(s[2:s.index(":")])
sW, sXCD, sY, sCP, sNON, sDSK = "s56", "s57", "s58", "s59", "s60", "s62"
sSL, sHW = "s100", "s101"

class Regs:
    def __init__(self, start=1, limit=256):
        self.n = start; self.limit = limit; self.hi = start
    def get(self, cnt=1, align=1):
        while self.n % align: self.n += 1
        b = self.n; self.n += cnt
        assert self.n <= self.limit, "out of VGPRs"
        self.hi = max(self.hi, self.n)
        return b
    def mark(self): return self.n
    def release(self, m): self.n = m

def CB(c): return 16 * (272 * c + 4 * (c & 3) + 2 * (c >> 2))
def v(i, n=1): return f"v{i}" if n == 1 else f"v[{i}:{i+n-1}]"
def f32(x): return hex(struct.unpack("<I", struct.pack("<f", float(x)))[0])

def bf16_rne_int(l):
    u = struct.unpack("<I", struct.pack("<f", float(l)))[0]
    u = (u + 0x7FFF + ((u >> 16) & 1)) & 0xFFFF0000
    return int(struct.unpack("<f", struct.pack("<I", u))[0])

def idx_table():
    where = {}
    A0 = [(i & 7) + 128 * (i >> 3) for i in range(16)]
    A1 = [256 + 2 * (i & 3) + 128 * (i >> 2) for i in range(8)] + [512 + 256 * p + q for p in range(2) for q in (0, 4, 128, 132)]
    A2 = [1024 + 128 * i for i in range(8)] + [2048]
    for T, A in enumerate((A0, A1, A2)):
        for i, a_ in enumerate(A):
            for j in range(16):
                if T < 2: lane, r = 16 * (i >> 2) + j, i & 3
                else:     lane, r = 16 * (j >> 2) + i, j & 3
                where.setdefault(a_ + 8 * j, T * 512 + lane * 8 + r * 2)
    idx = np.zeros(2064, np.uint16)
    for s in range(2064):
        lam = 2047 - s
        idx[s] = L_PAD if lam < 0 else where[bf16_rne_int(lam)]
    return idx

def gen(debug_dump=False, stamps=False, opt=None):
    opt = opt or {}
    C8 = opt.get("c8", 0)
    a = Asm(); R = Regs()
    stamp_slots = []
    def stamp(name):
        if not stamps: return
        if stamps is not True and name not in stamps and name != "end": return
        if name not in stamp_slots: stamp_slots.append(name)
        k = stamp_slots.index(name)
        a(f"{'s_memtime' if name.startswith('c_') else 's_memrealtime'} s[96:97]\ns_waitcnt lgkmcnt(0)\nv_writelane_b32 {v(vST)}, s96, {k}")
    lane = R.get(); vST = R.get()
    t0 = R.get(); t1 = R.get(); t2 = R.get(); t3 = R.get()
    vL16 = R.get(); vZ2 = R.get(2, 2); vZero = vZ2; vOne = R.get(); vT16 = R.get(); vH4 = R.get()
    vXBl = R.get(); vUw = R.get(); vM = R.get(); vQ = R.get(); vA = R.get(); vB = R.get(); vYw = R.get(); vYr = R.get()
    vXF = R.get(8, 2); vXN = R.get(8, 2)
    val = R.get(8, 2); yp = R.get(8, 2); ob = R.get(2, 2); tp = R.get(4, 2); vO = R.get(); vOj = R.get(2); d1 = R.get(2); vTk = R.get(); vBig = R.get(); vSelw = R.get(); vDsk = R.get(); vTouch = R.get(2); xsE = R.get(4, 2); msrE = R.get(2, 2)
    mkP = R.mark()
    a("s_cmp_ge_u32 s2, 256")
    a("s_cbranch_scc1 L_end")
    a("s_getpc_b64 s[98:99]")
    a.label("L_pc")
    a("s_load_dwordx16 s[72:87], s[0:1], 0")
    a("s_load_dwordx4 s[4:7], s[0:1], 96")
    a("s_load_dwordx8 s[88:95], s[0:1], 64")
    a("s_load_dwordx2 s[16:17], s[0:1], 112")
    a("s_memrealtime s[70:71]")
    if opt.get("pf_code", 1):
        C64 = opt.get("c64", 1)
        a(f"s_movk_i32 s3, {384 if C64 else 192}\nv_lshlrev_b32 {v(t0)}, {6 if C64 else 7}, v0\nv_min_u32 {v(t0)}, L_tab_end-L_pc-4, {v(t0)}\ns_cmp_lt_u32 s2, 16\ns_cselect_b64 vcc, -1, 0\nv_cmp_gt_u32 s[60:61], s3, v0\ns_and_b64 vcc, vcc, s[60:61]")
        a(f"s_and_saveexec_b64 s[60:61], vcc\ns_cbranch_execz L_nopf\nglobal_load_dword {v(vTouch)}, {v(t0)}, s[98:99]")
        a.label("L_nopf")
        a("s_mov_b64 exec, -1")
    vToff = R.get(); vPoff = R.get()
    a(f"v_lshrrev_b32 {v(t0)}, 6, v0\nv_and_b32 {v(lane)}, 63, v0")
    a(f"s_and_b32 {sXCD}, s2, 7\ns_lshr_b32 {sY}, s2, 3")
    a(f"v_readfirstlane_b32 {sW}, {v(t0)}")
    a("s_mov_b32 s10, 0x200000\ns_mov_b32 s11, 0x20000")
    a(f"v_and_b32 {v(t0)}, 7, {v(lane)}\nv_lshrrev_b32 {v(t1)}, 3, {v(lane)}\nv_lshlrev_b32 {v(vToff)}, 11, {v(t0)}\nv_lshl_or_b32 {v(vToff)}, {v(t1)}, 2, {v(vToff)}")
    a(f"v_lshlrev_b32 {v(vL16)}, 4, {v(lane)}\nv_lshlrev_b32 {v(vPoff)}, 1, {v(lane)}\nv_mov_b32 {v(vZero)}, 0")
    a(f"s_lshr_b32 s63, {sW}, 1\ns_lshl_b32 s63, s63, 4\ns_lshl_b32 s64, {sY}, 6\ns_add_u32 s63, s63, s64\ns_lshl_b32 s63, s63, 10\ns_lshl_b32 s64, {sXCD}, 7\ns_add_u32 s63, s63, s64")
    a(f"s_and_b32 s65, {sW}, 1\ns_lshl_b32 s64, s65, 6\ns_add_u32 s63, s63, s64")
    a(f"s_lshl_b32 s64, s2, 3\ns_lshl_b32 s68, {sW}, 1\ns_add_u32 s64, s64, s68\ns_lshl_b32 s64, s64, 10")
    a(f"s_bfe_u32 s66, {sW}, 0x10001\ns_lshl_b32 {sCP}, {sXCD}, 5\ns_add_u32 {sCP}, {sCP}, {sY}")
    a(f"s_lshl_b32 s67, {sCP}, 1\ns_add_u32 s67, s67, s66\ns_lshl_b32 s61, s67, 1\ns_lshl_b32 s67, s67, 8\ns_lshl_b32 s68, s65, 7\ns_add_u32 s67, s67, s68")
    vS = R.get(8, 2); vXR = R.get(8, 2); vWR = R.get(4, 2); vPar = R.get(5)
    a("s_waitcnt lgkmcnt(0)\ns_mov_b64 s[8:9], s[72:73]")
    if stamps: a(f"v_mov_b32 {v(vST)}, 0\nv_writelane_b32 {v(vST)}, s70, 63")
    a("s_mov_b64 s[52:53], s[6:7]\ns_mov_b32 s54, 256\ns_mov_b32 s55, s11")
    MODE = opt.get("nmode", 0)
    if MODE == 0:
        a(f"s_or_b32 s68, s2, {sW}\ns_cmp_lg_u32 s68, 0\ns_cbranch_scc1 L_nononce")
        a(f"s_or_b32 s68, s70, 1\nv_mov_b32 {v(t0)}, s68\ns_mov_b64 exec, 1\nbuffer_store_dword {v(t0)}, {v(vZero)}, {sDBG}, 0 offen sc1\ns_mov_b64 exec, -1")
        a.label("L_nononce")
    else:
        a(f"s_or_b32 s68, s2, {sW}\ns_cmp_eq_u32 s68, 0\ns_cselect_b32 s69, 0, 0x1000\ns_or_b32 s68, s70, 1\nv_mov_b32 {v(t0)}, s68")
        a(f"s_mov_b64 exec, 1\nbuffer_store_dword {v(t0)}, {v(vZero)}, {sDBG}, s69 offen sc1\ns_mov_b64 exec, -1")
    a(f"s_cmp_ge_u32 {sW}, 4\ns_cbranch_scc1 L_tileL")
    def tile_loads():
        for k in range(2):
            a(f"buffer_load_dword {v(vS+4*k)}, {v(vToff)}, {sX}, s63 offen offset:{32*k}\nbuffer_load_dword {v(vS+4*k+1)}, {v(vToff)}, {sX}, s63 offen offset:{1024+32*k}")
    tile_loads()
    a(f"buffer_load_dwordx4 {v(vXR,4)}, {v(vL16)}, {sX}, s64 offen\nbuffer_load_dwordx4 {v(vXR+4,4)}, {v(vL16)}, {sX}, s64 offen offset:1024")
    a("s_branch L_args")
    a.label("L_tileL")
    a("s_mov_b64 s[20:21], s[74:75]\ns_mov_b64 s[24:25], s[76:77]\ns_mov_b64 s[28:29], s[78:79]\ns_mov_b64 s[32:33], s[80:81]")
    for s_ in (sLAR, sAIM, sCRE, sCIM):
        b = srd_lo(s_); a(f"s_mov_b32 s{b+2}, 0x20000\ns_mov_b32 s{b+3}, s11")
    for k, s_ in enumerate((sLAR, sAIM, sCRE, sCIM)):
        a(f"buffer_load_ushort {v(vPar+k)}, {v(vPoff)}, {s_}, s67 offen")
    a(f"s_add_u32 s82, s82, s61\ns_addc_u32 s83, s83, 0\nglobal_load_ushort {v(vPar+4)}, {v(vZero)}, s[82:83]")
    tile_loads()
    a.label("L_args")
    stamp("a1")
    a("s_mov_b64 s[12:13], s[4:5]\ns_mov_b64 s[4:5], s[84:85]")
    for s_, size in ((sWS, 0x10000000), (sOUT, 0x200000)):
        b = srd_lo(s_); a(f"s_mov_b32 s{b+2}, {size:#x}\ns_mov_b32 s{b+3}, s11")
    a(f"v_mov_b32 {v(vZero+1)}, 0\nv_mov_b32 {v(vOne)}, 1")
    def arrive(addr):
        a(f"s_mov_b64 exec, 1\nds_add_u32 {v(vZero)}, {v(vOne)} offset:{addr}\ns_mov_b64 exec, -1")
    nspin = [0]
    def spin(addr, count, backoff=0):
        nspin[0] += 1; L = f"L_spin{nspin[0]}"
        a("s_mov_b32 s69, 0")
        a.label(L)
        a(f"ds_read_b32 {v(t3)}, {v(vZero)} offset:{addr}\ns_add_u32 s69, s69, 1\ns_waitcnt lgkmcnt(0)\nv_readfirstlane_b32 s68, {v(t3)}\ns_cmp_ge_u32 s68, {count}\ns_cbranch_scc1 {L}_go")
        if backoff: a(f"s_sleep {backoff}")
        a(f"s_cmp_lt_u32 s69, 4000000\ns_cbranch_scc1 {L}")
        a.label(L + "_go")
    vIX = R.get(8, 2); vPoll = R.get(3)
    a(f"v_lshlrev_b32 {v(vT16)}, 4, v0")
    a("s_mov_b64 s[40:41], s[90:91]\ns_mov_b64 s[44:45], s[92:93]\ns_mov_b64 s[48:49], s[94:95]")
    for s_ in (sWG, sWU, sWD):
        b = srd_lo(s_); a(f"s_mov_b32 s{b+2}, 1835008\ns_mov_b32 s{b+3}, s11")
    a(f"s_mul_i32 {sSL}, {sXCD}, 14\ns_add_u32 {sSL}, {sSL}, {sY}\ns_sub_u32 {sHW}, {sW}, 4")
    a(f"s_cmp_lt_u32 {sW}, 4\ns_cbranch_scc1 L_early_E")
    def w_touches(which="gud"):
        a(f"s_lshl_b32 s68, {sY}, 2\ns_add_u32 s68, s68, {sHW}")
        T64 = opt.get("t64", 1)
        if "g" in which or "u" in which:
            a(f"s_lshl_b32 s69, s68, 2\nv_bfe_u32 {v(t1)}, {v(lane)}, 3, 2\nv_add_u32 {v(t1)}, s69, {v(t1)}\nv_mul_u32_u24 {v(t1)}, 3584, {v(t1)}")
            if T64: a(f"v_and_b32 {v(t2)}, 7, {v(lane)}\nv_lshl_add_u32 {v(t1)}, {v(t2)}, 6, {v(t1)}\ns_mul_i32 s69, {sXCD}, 448\ns_and_b32 s69, s69, 0xffffff80")
            else:   a(f"v_and_b32 {v(t2)}, 3, {v(lane)}\nv_lshl_add_u32 {v(t1)}, {v(t2)}, 7, {v(t1)}\ns_mul_i32 s69, {sXCD}, 448\ns_and_b32 s69, s69, 0xffffff80")
            msk = "0xffffffff" if T64 else "0x0f0f0f0f"
            if "g" in which: a(f"s_mov_b32 exec_lo, {msk}\ns_mov_b32 exec_hi, 0\nbuffer_load_dword {v(vTouch)}, {v(t1)}, {sWG}, s69 offen")
            if "u" in which: a(f"s_mov_b32 exec_lo, {msk}\ns_mov_b32 exec_hi, 0\nbuffer_load_dword {v(vTouch+1)}, {v(t1)}, {sWU}, s69 offen")
        if "d" in which:
            if T64:
                a(f"s_mul_i32 s69, s68, 28\nv_add_u32 {v(t1)}, s69, {v(lane)}\nv_lshlrev_b32 {v(t1)}, 6, {v(t1)}\ns_mul_i32 s69, {sXCD}, {224*1024}")
                a(f"s_mov_b64 exec, 0xfffffff\nbuffer_load_dword {v(vTouch)}, {v(t1)}, {sWD}, s69 offen")
            else:
                a(f"s_mul_i32 s69, s68, 14\nv_add_u32 {v(t1)}, s69, {v(lane)}\nv_lshlrev_b32 {v(t1)}, 7, {v(t1)}\ns_mul_i32 s69, {sXCD}, {224*1024}")
                a(f"s_mov_b64 exec, 0x3fff\nbuffer_load_dword {v(vTouch)}, {v(t1)}, {sWD}, s69 offen")
        a("s_mov_b64 exec, -1")
    TP = {"g": opt.get("tg", 0), "u": opt.get("tu", 4), "d": opt.get("td", 2)}
    def touch_at(pos):
        w = "".join(k for k in "gud" if TP[k] == pos)
        if w: w_touches(w)
        return len(w)
    TW = -1
    def idx_loads(ch):
        a(f"s_add_u32 s92, s98, L_tab_idx-L_pc+{4128*ch}\ns_addc_u32 s93, s99, 0\nv_and_b32 {v(t0)}, 0xfff, {v(vT16)}")
        a(f"global_load_dwordx4 {v(vIX,4)}, {v(t0)}, s[92:93]\nglobal_load_dwordx4 {v(vIX+4,4)}, {v(t0)}, s[92:93] offset:16")
    NL_L = touch_at(0)
    idx_loads(1)
    if opt.get("tlb", 0):
        a(f"s_lshl_b32 s68, {sCP}, 14\nv_mov_b32 {v(t1)}, s68\ns_mov_b32 s69, {WS_SB + 32768}\nv_writelane_b32 {v(t1)}, s69, 1\ns_add_u32 s69, s69, {1 << 19}\nv_writelane_b32 {v(t1)}, s69, 2")
        a(f"s_mov_b64 exec, {3 if opt.get('tlb') == 1 else 7}\nbuffer_load_dword {v(vTouch)}, {v(t1)}, {sWS}, 0 offen sc1\ns_mov_b64 exec, -1")
        NL_L += 1
    a("s_branch L_init")
    a.label("L_early_E")
    a("s_mov_b64 s[36:37], s[88:89]\ns_mov_b32 s38, 1024\ns_mov_b32 s39, s11")
    a(f"buffer_load_dwordx4 {v(vWR,4)}, {v(vL16)}, {sWR}, 0 offen")
    a(f"s_cmp_lg_u32 {sW}, 0\ns_cbranch_scc1 L_nop0\nbuffer_load_dword {v(vPoll)}, {v(vZero)}, {sDBG}, 0 offen sc1")
    a.label("L_nop0")
    idx_loads(0)
    a(f"v_lshrrev_b32 {v(t0)}, 7, v0\nv_mul_u32_u24 {v(t0)}, {BLK}, {v(t0)}\nv_and_b32 {v(t1)}, 127, v0\nv_lshl_add_u32 {v(t0)}, {v(t1)}, 2, {v(t0)}\nds_write_b32 {v(t0)}, {v(vZero)} offset:{L_PAD}")
    a(f"v_lshlrev_b32 {v(t0)}, 2, {v(lane)}\nds_write_b32 {v(t0)}, {v(vZero)} offset:{L_MISC}")
    a.label("L_init")
    a("s_waitcnt lgkmcnt(0)\ns_barrier")
    vXBs = R.get(); vGHw = R.get(); vKA = R.get(); vKB = R.get(); vKTw = R.get(); vTag = R.get(); vKCw = R.get(); vZC = R.get()
    a(f"v_and_b32 {v(t0)}, 7, {v(lane)}\nv_lshrrev_b32 {v(t1)}, 3, {v(lane)}\nv_lshlrev_b32 {v(t1)}, 9, {v(t1)}\nv_lshl_or_b32 {v(vXBs)}, {v(t0)}, 4, {v(t1)}")
    a(f"s_lshl_b32 s72, {sCP}, 14\ns_lshl_b32 s68, s65, 13\ns_add_u32 s72, s72, s68\ns_lshr_b32 s68, {sW}, 1\ns_lshl_b32 s68, s68, 7\ns_add_u32 s72, s72, s68\ns_add_u32 s73, s72, 4096")
    def addr_block():
        a(f"v_lshrrev_b32 {v(t0)}, 5, v0\nv_lshlrev_b32 {v(t0)}, 14, {v(t0)}\nv_and_b32 {v(t1)}, 31, v0\nv_lshl_or_b32 {v(vXBl)}, {v(t1)}, 4, {v(t0)}")
        a(f"s_lshl_b32 s74, {sXCD}, 19\ns_lshl_b32 s68, {sY}, 9\ns_add_u32 s74, s74, s68\ns_add_u32 s75, s74, 0x40000")
        a(f"s_mov_b32 s76, {WS_SB}\ns_mov_b32 s77, {WS_SB + 8192}")
        a(f"s_mul_i32 s68, s66, {CHS}\ns_lshl_b32 s69, s65, 8\ns_add_u32 s68, s68, s69\ns_add_u32 s68, s68, {L_GH}\nv_lshl_add_u32 {v(vGHw)}, {v(lane)}, 2, s68")
        a(f"v_and_b32 {v(vM)}, 15, {v(lane)}\nv_lshrrev_b32 {v(vQ)}, 4, {v(lane)}")
        a(f"v_mul_u32_u24 {v(t0)}, {GHROW}, {v(vM)}\nv_lshl_add_u32 {v(t0)}, {v(vQ)}, 4, {v(t0)}")
        a(f"s_lshr_b32 s69, {sW}, 1\ns_mul_i32 s68, s65, {CHS}\ns_add_u32 s68, s68, {L_GH}\ns_add_u32 s78, s69, 1\ns_mul_i32 s78, s78, {GHT}\ns_add_u32 s78, s78, s68")
        a(f"s_cmp_eq_u32 s69, 2\ns_cselect_b32 s79, s68, s78\ns_cselect_b32 s80, s78, s68")
        a(f"v_add_u32 {v(vKA)}, s79, {v(t0)}\nv_add_u32 {v(vKB)}, s80, {v(t0)}")
        a(f"s_mul_i32 s68, s65, {BLK}\ns_lshl_b32 s69, s69, 9\ns_add_u32 s68, s68, s69\nv_lshl_add_u32 {v(vKTw)}, {v(lane)}, 3, s68")
        a(f"v_lshlrev_b32 {v(vUw)}, 2, v0\nv_add_u32 {v(vUw)}, {L_UD}, {v(vUw)}")
        a(f"v_bfe_u32 {v(t0)}, v0, 3, 4\nv_bfe_u32 {v(t1)}, v0, 1, 2\nv_lshrrev_b32 {v(t2)}, 1, {v(t0)}\nv_add_u32 {v(t1)}, {v(t1)}, {v(t2)}\nv_and_b32 {v(t1)}, 3, {v(t1)}")
        a(f"v_lshlrev_b32 {v(t1)}, 4, {v(t1)}\nv_lshl_add_u32 {v(t1)}, {v(t0)}, 6, {v(t1)}\nv_lshrrev_b32 {v(t2)}, 7, v0\nv_and_b32 {v(t2)}, 3, {v(t2)}\nv_lshl_add_u32 {v(t1)}, {v(t2)}, 10, {v(t1)}")
        a(f"v_and_b32 {v(t2)}, 1, v0\nv_lshl_add_u32 {v(t1)}, {v(t2)}, 3, {v(t1)}\nv_add_u32 {v(vYr)}, {L_YP}, {v(t1)}")
        a(f"v_and_b32 {v(vH4)}, 255, v0\nv_lshlrev_b32 {v(vH4)}, 2, {v(vH4)}")
        a(f"s_lshl_b32 s68, {sCP}, 2\ns_add_u32 s4, s4, s68\ns_addc_u32 s5, s5, 0\nglobal_load_dword {v(vDsk)}, {v(vZero)}, s[4:5]")
    def wave_reduce(regs, op="v_add_f32"):
        for sh in (1, 2, 4, 8):
            for r in regs: a(f"{op}_dpp {v(r)}, {v(r)}, {v(r)} row_shr:{sh} row_mask:0xf bank_mask:0xf bound_ctrl:0")
        for r in regs: a(f"{op}_dpp {v(r)}, {v(r)}, {v(r)} row_bcast:15 row_mask:0xa bank_mask:0xf")
        for r in regs: a(f"{op}_dpp {v(r)}, {v(r)}, {v(r)} row_bcast:31 row_mask:0xc bank_mask:0xf")
    def p1(nyounger):
        for k in range(2): a(f"v_mov_b32 {v(vS+4*k+2)}, {v(vTag)}\nv_mov_b32 {v(vS+4*k+3)}, {v(vTag)}")
        a(f"s_waitcnt vmcnt({nyounger})")
        for k, so in enumerate(("s72", "s73")):
            a(f"buffer_store_dwordx4 {v(vS+4*k,4)}, {v(vXBs)}, {sWS}, {so} offen sc1")
    mkK = R.mark()
    LOG2E = "0x3fb8aa3b"; INV2PI = "0x3e22f983"
    zr = R.get(4, 2); zi = zr + 1; cr = zr + 2; ci = zr + 3; tq = R.get(4); raw = R.get(4, 2)
    C = cr
    rot = [0]
    def tmp():
        rot[0] = (rot[0] + 1) & 3
        return tq + rot[0]
    def cx(): return R.get(2, 2)
    def cexp2(ta, tb):
        oa = cx(); ob = cx(); e = [tmp(), tmp(), tmp(), tmp()]
        a(f"v_mul_f32 {v(e[0])}, {f32(ta)}, {v(zr)}\nv_mul_f32 {v(e[1])}, {f32(ta)}, {v(zi)}\nv_mul_f32 {v(e[2])}, {f32(tb)}, {v(zr)}\nv_mul_f32 {v(e[3])}, {f32(tb)}, {v(zi)}")
        a(f"v_exp_f32 {v(e[0])}, {v(e[0])}\nv_fract_f32 {v(e[1])}, {v(e[1])}\nv_exp_f32 {v(e[2])}, {v(e[2])}\nv_fract_f32 {v(e[3])}, {v(e[3])}")
        a(f"v_cos_f32 {v(oa)}, {v(e[1])}\nv_sin_f32 {v(oa+1)}, {v(e[1])}\nv_cos_f32 {v(ob)}, {v(e[3])}\nv_sin_f32 {v(ob+1)}, {v(e[3])}")
        a(f"v_mul_f32 {v(oa)}, {v(oa)}, {v(e[0])}\nv_mul_f32 {v(oa+1)}, {v(oa+1)}, {v(e[0])}\nv_mul_f32 {v(ob)}, {v(ob)}, {v(e[2])}\nv_mul_f32 {v(ob+1)}, {v(ob+1)}, {v(e[2])}")
        return oa, ob
    def cmul(x, y, o=None):
        o = cx() if o is None else o
        a(f"v_pk_mul_f32 {v(o,2)}, {v(x,2)}, {v(y,2)} op_sel:[0,0] op_sel_hi:[0,1]")
        a(f"v_pk_fma_f32 {v(o,2)}, {v(x,2)}, {v(y,2)}, {v(o,2)} op_sel:[1,1,0] op_sel_hi:[1,0,1] neg_lo:[1,0,0]")
        return o
    def csq(x): return cmul(x, x)
    def put(val, T, row, conj=False):
        e = tmp()
        a(f"v_cvt_pk_bf16_f32 {v(e)}, {v(val)}, {'-' if conj else ''}{v(val+1)}\nds_write_b32 {v(vGHw)}, {v(e)} offset:{T*GHT + row*GHROW}")
    scr = [R.get(2, 2), R.get(2, 2), R.get(2, 2)]
    def rows(P, Q, T, row0, conj=False):
        for k, q_ in enumerate(Q): a(f"v_pk_mul_f32 {v(scr[k],2)}, {v(P,2)}, {v(q_,2)} op_sel:[0,0] op_sel_hi:[0,1]")
        put(P, T, row0, conj)
        for k, q_ in enumerate(Q): a(f"v_pk_fma_f32 {v(scr[k],2)}, {v(P,2)}, {v(q_,2)}, {v(scr[k],2)} op_sel:[1,1,0] op_sel_hi:[1,0,1] neg_lo:[1,0,0]")
        for k in range(3): put(scr[k], T, row0 + 1 + k, conj)
    def addr_block_E():
        if C8:
            a(f"v_and_b32 {v(t0)}, 7, {v(vM)}\nv_mul_u32_u24 {v(t1)}, 272, {v(t0)}\nv_and_b32 {v(t2)}, 3, {v(vM)}\nv_lshl_add_u32 {v(t1)}, {v(t2)}, 2, {v(t1)}")
            a(f"v_bfe_u32 {v(t2)}, {v(vM)}, 2, 1\nv_lshl_add_u32 {v(t1)}, {v(t2)}, 1, {v(t1)}\nv_add_u32 {v(t1)}, {v(t1)}, {v(vQ)}\nv_lshrrev_b32 {v(t2)}, 3, {v(vM)}\nv_sub_u32 {v(t1)}, {v(t1)}, {v(t2)}")
            a(f"s_mul_i32 s78, s66, {CHS}\ns_lshl_b32 s79, s65, 8\ns_sub_u32 s78, s78, s79\ns_add_u32 s78, s78, {L_GH + 464 - 192}\nv_lshl_add_u32 {v(vA)}, {v(t1)}, 4, s78")
        else:
            a(f"v_and_b32 {v(t0)}, 3, {v(vM)}\nv_mul_u32_u24 {v(t0)}, {KCS}, {v(t0)}\nv_lshrrev_b32 {v(t1)}, 2, {v(vM)}\nv_lshlrev_b32 {v(t1)}, 3, {v(t1)}\nv_sub_u32 {v(t0)}, {v(t0)}, {v(t1)}\nv_lshl_add_u32 {v(t0)}, {v(vQ)}, 4, {v(t0)}")
            a(f"s_mul_i32 s78, s66, {KCH}\ns_lshl_b32 s79, s65, 8\ns_sub_u32 s78, s78, s79\ns_add_u32 s78, s78, {L_GH + 472 - 192}\nv_add_u32 {v(vA)}, s78, {v(t0)}")
        a(f"s_mul_i32 s78, s66, {BLK}\ns_sub_u32 s78, s78, s79\ns_add_u32 s78, s78, {L_UD - 32 - 192}")
        a(f"v_lshlrev_b32 {v(t1)}, 5, {v(vM)}\nv_lshl_add_u32 {v(t1)}, {v(vQ)}, 4, {v(t1)}\nv_add_u32 {v(vB)}, s78, {v(t1)}")
        a(f"v_lshrrev_b32 {v(t1)}, 1, {v(vM)}\nv_add_u32 {v(t1)}, {v(t1)}, {v(vQ)}\nv_and_b32 {v(t1)}, 3, {v(t1)}\nv_lshlrev_b32 {v(t1)}, 4, {v(t1)}\nv_lshl_add_u32 {v(t1)}, {v(vM)}, 6, {v(t1)}")
        a(f"s_lshl_b32 s78, {sW}, 13\ns_add_u32 s78, s78, {L_YP}\nv_add_u32 {v(vYw)}, s78, {v(t1)}")
    mk2 = R.mark()
    addr_block()
    a(f"s_cmp_ge_u32 {sW}, 4\ns_cbranch_scc1 L_roleL")
    a(f"s_cmp_lg_u32 {sW}, 0\ns_cbranch_scc1 L_nop1\nbuffer_load_dword {v(vPoll+1)}, {v(vZero)}, {sDBG}, 0 offen sc1")
    a.label("L_nop1")
    stamp("par")
    a(f"s_cmp_lg_u32 {sW}, 0\ns_cbranch_scc1 L_npoll_done\ns_mov_b32 s68, 0")
    a(f"buffer_load_dword {v(vPoll+2)}, {v(vZero)}, {sDBG}, 0 offen sc1")
    a(f"s_waitcnt vmcnt(5)\nv_readfirstlane_b32 {sNON}, {v(vPoll)}\ns_cmp_lg_u32 {sNON}, 0\ns_cbranch_scc1 L_npoll_ok\ns_mov_b32 s68, 1")
    a(f"s_waitcnt vmcnt(1)\nv_readfirstlane_b32 {sNON}, {v(vPoll+1)}\ns_cmp_lg_u32 {sNON}, 0\ns_cbranch_scc1 L_npoll_ok\ns_mov_b32 s68, 2")
    a(f"s_waitcnt vmcnt(0)\nv_readfirstlane_b32 {sNON}, {v(vPoll+2)}\ns_cmp_lg_u32 {sNON}, 0\ns_cbranch_scc1 L_npoll_ok")
    a.label("L_npoll")
    a(f"buffer_load_dword {v(t0)}, {v(vZero)}, {sDBG}, 0 offen sc1\ns_waitcnt vmcnt(0)\nv_readfirstlane_b32 {sNON}, {v(t0)}")
    a(f"s_add_u32 s68, s68, 1\ns_cmp_lg_u32 {sNON}, 0\ns_cbranch_scc1 L_npoll_ok\ns_cmp_lt_u32 s68, 200000\ns_cbranch_scc1 L_npoll")
    a.label("L_npoll_ok")
    a(f"v_mov_b32 {v(vTag)}, {sNON}\nds_write_b32 {v(vZero)}, {v(vTag)} offset:{M_NONCE}\ns_branch L_tagE")
    a.label("L_npoll_done")
    spin(M_NONCE, 1)
    a(f"s_mov_b32 {sNON}, s68\nv_mov_b32 {v(vTag)}, s68")
    a.label("L_tagE")
    stamp("b0")
    p1(2 + 1 + 2 + 1)
    stamp("p1")
    f = R.get(16); s1 = R.get(2); s2 = R.get(2); pk = R.get(8); one = R.get(); rs = R.get(2); mr = R.get(2); un = R.get(4, 2); ta = R.get(2); tb = R.get(2)
    a(f"v_mov_b32 {v(one)}, 0x3f803f80")
    R2 = range(2)
    for r in R2: a(f"v_mov_b32 {v(s1+r)}, 0\nv_mov_b32 {v(s2+r)}, 0")
    a(f"s_waitcnt vmcnt({1 + 2 + 1 + 2})")
    for k in range(4):
        for r in R2: a(f"v_dot2_f32_bf16 {v(s1+r)}, {v(vXR+4*r+k)}, {v(one)}, {v(s1+r)}\nv_dot2_f32_bf16 {v(s2+r)}, {v(vXR+4*r+k)}, {v(vXR+4*r+k)}, {v(s2+r)}")
    for k in range(2):
        for r in R2: a(f"v_lshlrev_b32 {v(f+8*r+2*k)}, 16, {v(vXR+4*r+k)}\nv_and_b32 {v(f+8*r+2*k+1)}, 0xffff0000, {v(vXR+4*r+k)}")
    wave_reduce([s1, s1+1, s2, s2+1])
    for k in range(2, 4):
        for r in R2: a(f"v_lshlrev_b32 {v(f+8*r+2*k)}, 16, {v(vXR+4*r+k)}\nv_and_b32 {v(f+8*r+2*k+1)}, 0xffff0000, {v(vXR+4*r+k)}")
    for r in R2: a(f"v_mul_f32 {v(s1+r)}, 0x3b000000, {v(s1+r)}\nv_mul_f32 {v(s2+r)}, 0x3b000000, {v(s2+r)}")
    for r in R2: a(f"v_fma_f32 {v(s2+r)}, -{v(s1+r)}, {v(s1+r)}, {v(s2+r)}")
    for r in R2: a(f"v_max_f32 {v(s2+r)}, 0, {v(s2+r)}")
    for r in R2: a(f"v_cvt_pk_bf16_f32 {v(ta+r)}, {v(s1+r)}, {v(s2+r)}")
    for r in R2: a(f"v_and_b32 {v(tb+r)}, 0xffff0000, {v(ta+r)}")
    for r in R2: a(f"v_add_f32 {v(tb+r)}, 0x3727c5ac, {v(tb+r)}")
    for r in R2: a(f"v_cvt_pk_bf16_f32 {v(tb+r)}, {v(tb+r)}, {v(tb+r)}")
    for r in R2: a(f"v_and_b32 {v(tb+r)}, 0xffff0000, {v(tb+r)}")
    for r in R2: a(f"v_sqrt_f32 {v(tb+r)}, {v(tb+r)}")
    for r in R2: a(f"v_and_b32 {v(un+r)}, 0xffff, {v(ta+r)}")
    for r in R2: a(f"v_cvt_pk_bf16_f32 {v(tb+r)}, {v(tb+r)}, {v(tb+r)}")
    for r in R2: a(f"v_and_b32 {v(tb+r)}, 0xffff0000, {v(tb+r)}")
    for r in R2: a(f"v_rcp_f32 {v(rs+r)}, {v(tb+r)}")
    for r in R2: a(f"v_lshlrev_b32 {v(ta+r)}, 16, {v(ta+r)}\nv_or_b32 {v(un+r)}, {v(un+r)}, {v(tb+r)}")
    for r in R2: a(f"v_mul_f32 {v(mr+r)}, {v(ta+r)}, {v(rs+r)}")
    for r in R2: a(f"v_readlane_b32 s{84+r}, {v(rs+r)}, 63\nv_readlane_b32 s{86+r}, {v(mr+r)}, 63")
    for r in R2: a(f"v_mov_b32 {v(rs+r)}, s{84+r}\nv_mov_b32 {v(mr+r)}, s{86+r}")
    for k in range(8):
        for r in R2: a(f"v_fma_f32 {v(f+8*r+k)}, {v(f+8*r+k)}, {v(rs+r)}, -{v(mr+r)}")
    for k in range(4):
        for r in R2: a(f"v_cvt_pk_bf16_f32 {v(pk+4*r+k)}, {v(f+8*r+2*k)}, {v(f+8*r+2*k+1)}")
    for r in R2: a(f"v_mov_b32 {v(s1+r)}, 0")
    a(f"s_waitcnt vmcnt({2 + 1 + 2})")
    for k in range(4):
        for r in R2: a(f"v_dot2_f32_bf16 {v(s1+r)}, {v(pk+4*r+k)}, {v(vWR+k)}, {v(s1+r)}")
    a(f"v_mov_b32 {v(un+3)}, {v(vTag)}\ns_lshl_b32 s68, s2, 2\ns_add_u32 s68, s68, {sW}\ns_lshl_b32 s68, s68, 4\ns_add_u32 s68, s68, {WS_SB}")
    wave_reduce([s1, s1+1])
    a(f"v_cvt_pk_bf16_f32 {v(un+2)}, {v(s1)}, {v(s1+1)}")
    a(f"s_mov_b32 exec_lo, 0\ns_mov_b32 exec_hi, 0x80000000\nbuffer_store_dwordx4 {v(un,4)}, {v(vZero)}, {sWS}, s68 offen sc1\ns_mov_b64 exec, -1")
    stamp("p2")
    R.release(mk2)
    spin(M_CZ, 4)
    a(f"ds_read_b128 {v(zr,4)}, {v(vT16)} offset:{L_KEY}\ns_waitcnt lgkmcnt(0)")
    E2, E128 = cexp2(2, 128)
    G2E = opt.get("g2e", 1)
    E4 = csq(E2); E256 = csq(E128); E6 = cmul(E2, E4); E512 = csq(E256); E132 = cmul(E4, E128)
    P0 = cmul(C, E256); P2 = cmul(C, E512); P1 = cmul(P0, E128); P3 = cmul(P2, E256)
    if G2E: E1024 = csq(E512); E384 = cmul(E128, E256)
    rows(P0, (E2, E4, E6), 2, 0)
    if G2E: P0 = cmul(C, E1024, P0); E2048 = csq(E1024)
    rows(P1, (E2, E4, E6), 2, 4)
    if G2E: P1 = cmul(P0, E512, P1)
    rows(P2, (E4, E128, E132), 2, 8)
    if G2E: P2 = cmul(C, E2048, P2)
    rows(P3, (E4, E128, E132), 2, 12)
    if G2E:
        rows(P0, (E128, E256, E384), 3, 0); rows(P1, (E128, E256, E384), 3, 4)
        put(P2, 3, 8)
    a("s_branch L_kgen_done")
    R.release(mk2)
    a.label("L_roleL")
    a(f"v_subrev_u32 {v(t2)}, 4096, {v(vT16)}\ns_waitcnt vmcnt({4 + NL_L + 2 + 1})")
    stamp("lpar")
    NL_L += touch_at(3)
    a(f"v_lshlrev_b32 {v(t0)}, 16, {v(vPar+4)}\nv_lshlrev_b32 {v(t1)}, 16, {v(vPar)}\nv_mul_f32 {v(t0)}, {LOG2E}, {v(t0)}\nv_mul_f32 {v(t1)}, {LOG2E}, {v(t1)}\nv_exp_f32 {v(t0)}, {v(t0)}\nv_exp_f32 {v(t1)}, {v(t1)}")
    a(f"v_lshlrev_b32 {v(zi)}, 16, {v(vPar+1)}\nv_lshlrev_b32 {v(cr)}, 16, {v(vPar+2)}\nv_lshlrev_b32 {v(ci)}, 16, {v(vPar+3)}")
    a(f"v_cvt_pk_bf16_f32 {v(t0)}, {v(t1)}, {v(t0)}")
    a(f"v_lshlrev_b32 {v(t1)}, 16, {v(t0)}\nv_and_b32 {v(t0)}, 0xffff0000, {v(t0)}")
    a(f"v_mul_f32 {v(zr)}, {v(t1)}, {v(t0)}\nv_mul_f32 {v(zi)}, {v(zi)}, {v(t0)}\nv_add_f32 {v(t0)}, {v(t0)}, {v(t0)}")
    a(f"v_mul_f32 {v(zr)}, 0xbfb8aa3b, {v(zr)}\nv_mul_f32 {v(zi)}, {INV2PI}, {v(zi)}\nv_mul_f32 {v(cr)}, {v(cr)}, {v(t0)}\nv_mul_f32 {v(ci)}, {v(ci)}, {v(t0)}")
    a(f"ds_write_b128 {v(t2)}, {v(zr,4)} offset:{L_KEY}")
    arrive(M_CZ)
    E1, E64 = cexp2(1, 64)
    E2 = csq(E1); E128 = csq(E64); E4 = csq(E2); P2 = cmul(C, E128); E8 = csq(E4); E3 = cmul(E1, E2); E16 = csq(E8)
    if not G2E: E256 = csq(E128)
    P1 = cmul(C, E4); E32 = csq(E16); P3 = cmul(P2, E4); E24 = cmul(E8, E16)
    if not G2E: E512 = csq(E256)
    E96 = cmul(E64, E32)
    spin(M_NONCE, 1)
    a(f"s_mov_b32 {sNON}, s68\nv_mov_b32 {v(vTag)}, s68")
    p1(NL_L + 2 + 1)
    stamp("lp1")
    touch_at(1)
    for k, P in enumerate((C, P1, P2, P3)): rows(P, (E1, E2, E3), 1, 4*k)
    touch_at(4)
    if not G2E: E1024 = csq(E512); E384 = cmul(E128, E256, E1)
    e = tmp(); a(f"v_mov_b32 {v(e)}, 0x3f80\nds_write_b32 {v(vGHw)}, {v(e)} offset:0")
    for k, q_ in enumerate((E8, E16, E24)): put(q_, 0, 1 + k, True)
    if not G2E: P0 = cmul(C, E1024, P1); E2048 = csq(E1024)
    for k, P in enumerate((E32, E64, E96)): rows(P, (E8, E16, E24), 0, 4*(k+1), True)
    if not G2E:
        P1 = cmul(P0, E512, P2); P2 = cmul(C, E2048, P3)
        rows(P0, (E128, E256, E384), 3, 0); rows(P1, (E128, E256, E384), 3, 4)
        put(P2, 3, 8)
    touch_at(2)
    a.label("L_kgen_done")
    R.release(mkK)
    stamp("kgen")
    vXA = R.get(4, 2); vXB_ = R.get(4, 2); vSA = R.get(4, 2); vSB_ = R.get(4, 2)
    def x_loads():
        a(f"buffer_load_dwordx4 {v(vXA,4)}, {v(vXBl)}, {sWS}, s74 offen sc1\nbuffer_load_dwordx4 {v(vXB_,4)}, {v(vXBl)}, {sWS}, s75 offen sc1")
    def s_loads():
        a(f"buffer_load_dwordx4 {v(vSA,4)}, {v(vT16)}, {sWS}, s76 offen sc1\nbuffer_load_dwordx4 {v(vSB_,4)}, {v(vT16)}, {sWS}, s77 offen sc1")
    a("s_waitcnt lgkmcnt(0)\ns_barrier")
    stamp("b2")
    a(f"s_cmp_ge_u32 {sW}, 6\ns_cbranch_scc1 L_w67")
    mk = R.mark()
    acc = R.get(4, 4); fa = R.get(32, 4); fb = R.get(32, 4); kw = R.get(2, 2)
    rd = lambda s_: a(f"ds_read_b128 {v(fa+4*s_,4)}, {v(vKA)} offset:{64*s_}\nds_read_b128 {v(fb+4*s_,4)}, {v(vKB)} offset:{64*s_}")
    for s_ in range(6): rd(s_)
    for s_ in range(8):
        out_ = 10 if s_ < 2 else 2*(7 - s_)
        a(f"s_waitcnt lgkmcnt({out_})\nv_mfma_f32_16x16x32_bf16 {v(acc,4)}, {v(fa+4*s_,4)}, {v(fb+4*s_,4)}, {'0' if s_ == 0 else v(acc,4)}")
        if s_ + 6 < 8: rd(s_ + 6)
    a(f"v_cvt_pk_bf16_f32 {v(kw)}, {v(acc)}, {v(acc+1)}\nv_cvt_pk_bf16_f32 {v(kw+1)}, {v(acc+2)}, {v(acc+3)}\nds_write_b64 {v(vKTw)}, {v(kw,2)}")
    arrive(M_CK)
    R.release(mk)
    a("s_branch L_nokt")
    a.label("L_w67")
    WDY = opt.get("wdy", 1)
    if WDY:
        a("s_waitcnt vmcnt(4)")
        a(f"s_cmp_ge_u32 {sY}, 14\ns_cbranch_scc1 L_nokt")
        a(f"s_lshl_b32 s68, {sSL}, 14\ns_and_b32 s69, {sW}, 1\ns_lshl_b32 s3, s69, 13\ns_add_u32 s68, s68, s3\ns_lshl_b32 s69, s69, 14\ns_add_u32 m0, s69, {L_YP + 4096}")
        for i in range(8):
            a(f"buffer_load_dwordx4 {v(vL16)}, {sWD}, s68 offen lds")
            if i < 7: a(f"s_add_u32 m0, m0, {8192 - 3072 if i == 3 else 1024}\ns_add_u32 s68, s68, 1024")
    a.label("L_nokt")
    a(f"s_cmp_ge_u32 {sW}, 4\ns_cbranch_scc1 L_noE")
    addr_block_E()
    a.label("L_noE")
    sc = R.get(16, 2)
    mk = R.mark()
    ga = R.get(11); g = R.get(11); dd = R.get(4, 2); ee = R.get(4, 2); ss = R.get(4, 2); ff = R.get(4, 2)
    a(f"s_lshr_b32 s68, {sW}, 2\ns_mul_i32 s68, s68, {KCH}\ns_add_u32 s68, s68, {L_GH}\nv_and_b32 {v(t0)}, 0xfff, {v(vT16)}\nv_add_u32 {v(vKCw)}, s68, {v(t0)}")
    a(f"v_bfe_u32 {v(t1)}, {v(lane)}, 1, 2\nv_mul_u32_u24 {v(t1)}, {KCS}, {v(t1)}\nv_and_b32 {v(t2)}, 1, {v(lane)}\nv_lshl_add_u32 {v(t1)}, {v(t2)}, 4, {v(t1)}\ns_add_u32 s68, s68, 4096\nv_add_u32 {v(vZC)}, s68, {v(t1)}")
    if WDY:
        a(f"s_cmp_ge_u32 {sW}, 6\ns_cbranch_scc1 L_ixd\ns_waitcnt vmcnt(4)")
        a.label("L_ixd")
    else:
        a(f"s_waitcnt vmcnt(4)")
    for k in range(11):
        if k & 1: a(f"v_lshrrev_b32 {v(ga+k)}, 16, {v(vIX+(k>>1))}")
        else:     a(f"v_and_b32 {v(ga+k)}, 0xffff, {v(vIX+(k>>1))}")
    spin(M_CK, 6)
    stamp("ktab")
    x_loads(); s_loads()
    SC = opt.get("sc", 0)
    if SC:
        def sc_loads():
            for j in range(8): a(f"buffer_load_dwordx2 {v(sc+2*j,2)}, {v(vL16)}, {sWS}, s{88 + (j >> 2)} offen offset:{8 + 1024*(j & 3)} sc1")
        a(f"s_sub_u32 s68, {sW}, 4\ns_cmp_ge_u32 s68, 2\ns_cbranch_scc1 L_nosc\ns_lshl_b32 s88, s68, 13\ns_add_u32 s88, s88, {WS_SB}\ns_add_u32 s89, s88, 4096")
        sc_loads()
        a.label("L_nosc")
    for k in range(11): a(f"ds_read_u16 {v(g+k)}, {v(ga+k)}")
    def pack(dst, hi, lo): a(f"v_lshl_or_b32 {v(dst)}, {v(g+hi)}, 16, {v(g+lo)}")
    a("s_waitcnt lgkmcnt(3)")
    for p in range(4): pack(dd+p, 2*p+1, 2*p)
    a(f"ds_write_b128 {v(vKCw)}, {v(dd,4)} offset:{3*KCS}\ns_waitcnt lgkmcnt(1)")
    for p in range(4): pack(ss+p, 2*p+2, 2*p+1)
    a(f"ds_write_b128 {v(vKCw)}, {v(ss,4)} offset:{2*KCS}")
    for p in range(4): pack(ee+p, 2*p+3, 2*p+2)
    a(f"ds_write_b128 {v(vKCw)}, {v(ee,4)} offset:{1*KCS}")
    for p in range(4): pack(ff+p, 2*p+4, 2*p+3)
    a(f"ds_write_b128 {v(vKCw)}, {v(ff,4)} offset:0")
    a(f"s_and_b32 s68, {sW}, 3\ns_cmp_lg_u32 s68, 0\ns_cbranch_scc1 L_nozc")
    for k in range(4): a(f"v_mov_b32 {v(dd+k)}, 0")
    a(f"s_mov_b64 exec, 0xff\nds_write_b128 {v(vZC)}, {v(dd,4)}\ns_mov_b64 exec, -1")
    a.label("L_nozc")
    R.release(mk)
    stamp("kcopy")
    WDL = opt.get("wd_late", 0)
    def wd_dma():
        if C8:
            a(f"s_lshl_b32 s68, {sSL}, 14\ns_and_b32 s69, {sW}, 1\ns_lshl_b32 s3, s69, 13\ns_add_u32 s68, s68, s3\ns_lshl_b32 s69, s69, 14\ns_add_u32 m0, s69, {L_YP + 4096}")
        else:
            a(f"s_lshl_b32 s68, {sSL}, 14\ns_and_b32 s69, {sW}, 1\ns_lshl_b32 s69, s69, 13\ns_add_u32 s68, s68, s69\ns_add_u32 m0, s69, {L_WD}")
        for i in range(8):
            a(f"buffer_load_dwordx4 {v(vL16)}, {sWD}, s68 offen lds")
            if i < 7: a(f"s_add_u32 m0, m0, {8192 - 3072 if (C8 and i == 3) else 1024}\ns_add_u32 s68, s68, 1024")
    def merge(x1, x2, b1, b2): a(f"v_max_f32 {v(x2)}, {v(x2)}, {v(b2)}\nv_med3_f32 {v(x2)}, {v(x1)}, {v(b1)}, {v(x2)}\nv_max_f32 {v(x1)}, {v(x1)}, {v(b1)}")
    def wave_top2(k1, k2, da, db):
        NEG = "0xff800000"
        for ctl in ("row_shr:1 row_mask:0xf", "row_shr:2 row_mask:0xf", "row_shr:4 row_mask:0xf", "row_shr:8 row_mask:0xf", "row_bcast:15 row_mask:0xa", "row_bcast:31 row_mask:0xc"):
            a(f"v_mov_b32 {v(da)}, {NEG}\nv_mov_b32 {v(db)}, {NEG}")
            a(f"v_mov_b32_dpp {v(da)}, {v(k1)} {ctl} bank_mask:0xf\nv_mov_b32_dpp {v(db)}, {v(k2)} {ctl} bank_mask:0xf")
            merge(k1, k2, da, db)
    LATE = opt.get("dma_late", 1)
    def mat_dma(srd, ldsbase, tag):
        mk = R.mark(); vG = R.get()
        a(f"v_lshrrev_b32 {v(vG)}, 1, {v(lane)}\nv_mul_u32_u24 {v(vG)}, 3584, {v(vG)}\nv_and_b32 {v(t3)}, 1, {v(lane)}\nv_lshl_add_u32 {v(vG)}, {v(t3)}, 4, {v(vG)}")
        a(f"s_and_b32 s69, {sW}, 1\ns_mul_i32 s68, s69, {256*3584}\ns_lshl_b32 s3, {sSL}, 5\ns_add_u32 s68, s68, s3\ns_lshl_b32 s69, s69, 13\ns_add_u32 m0, s69, {ldsbase}\ns_mov_b32 s69, 0")
        a.label(f"L_dma{tag}")
        for i in range(4):
            a(f"buffer_load_dwordx4 {v(vG)}, {srd}, s68 offen lds\ns_add_u32 m0, m0, 1024\ns_add_u32 s68, s68, {32*3584}")
        a(f"s_add_u32 s69, s69, 1\ns_cmp_lt_u32 s69, 2\ns_cbranch_scc1 L_dma{tag}")
        R.release(mk)
    DM = 0; GE = opt.get("ge2", 0)
    if SC:
        a(f"s_sub_u32 s68, {sW}, 4\ns_cmp_ge_u32 s68, 2\ns_cbranch_scc1 L_nosc2")
        if opt.get("scprio", 1): a("s_setprio 3")
        mks = R.mark()
        ke = R.get(16); kb = R.get(); msk = R.get(); c4 = R.get(4, 2)
        a(f"s_lshl_b32 s68, {sHW}, 10\nv_lshlrev_b32 {v(kb)}, 1, {v(lane)}\nv_add_u32 {v(kb)}, s68, {v(kb)}\nv_sub_u32 {v(kb)}, 0xffff, {v(kb)}\nv_mov_b32 {v(msk)}, 0xffff0000\ns_mov_b32 s61, 0")
        a.label("L_scpoll")
        a("s_waitcnt vmcnt(0)")
        a(f"v_cmp_ne_u32 vcc, {sNON}, {v(vXA+3)}\nv_cmp_ne_u32 s[78:79], {sNON}, {v(vXB_+3)}\nv_cmp_ne_u32 s[80:81], {sNON}, {v(vSA+3)}\nv_cmp_ne_u32 s[82:83], {sNON}, {v(vSB_+3)}")
        a("s_or_b64 vcc, vcc, s[78:79]\ns_or_b64 s[80:81], s[80:81], s[82:83]\ns_or_b64 vcc, vcc, s[80:81]")
        for j in range(0, 8, 2):
            a(f"v_cmp_ne_u32 s[78:79], {sNON}, {v(sc+2*j+1)}\nv_cmp_ne_u32 s[80:81], {sNON}, {v(sc+2*j+3)}\ns_or_b64 vcc, vcc, s[78:79]\ns_or_b64 vcc, vcc, s[80:81]")
        a(f"s_cbranch_vccz L_scok\ns_add_u32 s61, s61, 1\ns_cmp_ge_u32 s61, 100000\ns_cbranch_scc1 L_scok")
        x_loads(); s_loads(); sc_loads()
        a("s_branch L_scpoll")
        a.label("L_scok")
        stamp("m_sc")
        for j in range(8):
            a(f"v_subrev_u32 {v(t0)}, {128*j}, {v(kb)}\nv_lshl_or_b32 {v(ke+2*j)}, {v(sc+2*j)}, 16, {v(t0)}\nv_subrev_u32 {v(t0)}, 1, {v(t0)}\nv_and_or_b32 {v(ke+2*j+1)}, {v(sc+2*j)}, {v(msk)}, {v(t0)}")
        for j in range(8):
            a(f"v_max_f32 {v(sc+2*j)}, {v(ke+2*j)}, {v(ke+2*j+1)}\nv_min_f32 {v(sc+2*j+1)}, {v(ke+2*j)}, {v(ke+2*j+1)}")
        for st in (1, 2, 4):
            for j in range(0, 8, 2*st): merge(sc+2*j, sc+2*j+1, sc+2*(j+st), sc+2*(j+st)+1)
        wave_top2(sc, sc+1, ke, ke+1)
        a(f"s_lshl_b32 s68, {sHW}, 3\nv_mov_b32 {v(t0)}, s68\ns_mov_b32 exec_lo, 0\ns_mov_b32 exec_hi, 0x80000000\nds_write_b64 {v(t0)}, {v(sc,2)} offset:{M_CAND}\ns_mov_b64 exec, -1")
        arrive(M_CKEY)
        spin(M_CKEY, 2)
        a(f"ds_read_b128 {v(c4,4)}, {v(vZero)} offset:{M_CAND}\ns_waitcnt lgkmcnt(0)")
        merge(c4, c4+1, c4+2, c4+3)
        a(f"v_readfirstlane_b32 s84, {v(c4)}\nv_readfirstlane_b32 s85, {v(c4+1)}")
        a("s_and_b32 s86, s84, 0xffff\ns_sub_u32 s86, 0xffff, s86\ns_and_b32 s87, s85, 0xffff\ns_sub_u32 s87, 0xffff, s87")
        a(f"s_cmp_eq_u32 {sW}, 4\ns_cselect_b32 s88, s86, s87\ns_lshl_b32 s68, s88, 10\ns_lshr_b32 s69, s88, 1\ns_lshl_b32 s69, s69, 4\ns_add_u32 s69, s69, {WS_SB}")
        a(f"s_cmp_ge_u32 {sY}, 14\ns_cbranch_scc1 L_norow2\nbuffer_load_dwordx4 {v(xsE,4)}, {v(vL16)}, {sX}, s68 offen\nbuffer_load_dwordx2 {v(msrE,2)}, {v(vZero)}, {sWS}, s69 offen sc1")
        a.label("L_norow2")
        a(f"s_cmp_lg_u32 {sW}, 4\ns_cbranch_scc1 L_notop2")
        a(f"v_mov_b32 {v(tp)}, s86\nv_mov_b32 {v(tp+1)}, s87\nv_mov_b32 {v(tp+2)}, s84\nv_mov_b32 {v(tp+3)}, s85")
        a(f"s_mov_b64 exec, 1\nds_write_b128 {v(vZero)}, {v(tp,4)} offset:{M_TOP}\ns_mov_b64 exec, -1")
        a.label("L_notop2")
        arrive(M_CY1)
        R.release(mks)
        stamp("m_top")
        a("s_branch L_xok")
        a.label("L_nosc2")
    if GE:
        a(f"s_cmp_lt_u32 {sW}, 6\ns_cbranch_scc1 L_p4\ns_cmp_ge_u32 {sY}, 14\ns_cbranch_scc1 L_p4")
        mat_dma(sWG, L_MW, "g3")
        if GE == 2: mat_dma(sWU, L_MW + 16384, "u3")
        a(f"s_mov_b32 s61, 0\ns_waitcnt vmcnt({8*GE})\ns_branch L_xchk")
    if not WDL and not WDY:
        a(f"s_sub_u32 s68, {sW}, 4\ns_cmp_ge_u32 s68, 2\ns_cbranch_scc1 L_p4\ns_cmp_ge_u32 {sY}, 14\ns_cbranch_scc1 L_p4")
        wd_dma()
    a.label("L_p4")
    a("s_mov_b32 s61, 0")
    a.label("L_xpoll")
    a("s_waitcnt vmcnt(0)")
    a.label("L_xchk")
    a(f"v_cmp_ne_u32 vcc, {sNON}, {v(vXA+3)}\nv_cmp_ne_u32 s[78:79], {sNON}, {v(vXB_+3)}\nv_cmp_ne_u32 s[80:81], {sNON}, {v(vSA+3)}\nv_cmp_ne_u32 s[82:83], {sNON}, {v(vSB_+3)}")
    a("s_or_b64 vcc, vcc, s[78:79]\ns_or_b64 s[80:81], s[80:81], s[82:83]\ns_or_b64 vcc, vcc, s[80:81]")
    a(f"s_cbranch_vccz L_xok\ns_add_u32 s61, s61, 1\ns_cmp_ge_u32 s61, 100000\ns_cbranch_scc1 L_xok")
    x_loads(); s_loads()
    a("s_branch L_xpoll")
    a.label("L_xok")
    if stamps and stamps is not True and "npoll" in stamps:
        stamp_slots.append("npoll"); a(f"v_writelane_b32 {v(vST)}, s61, {len(stamp_slots)-1}")
    stamp("xvalid")
    if 5 in TP.values():
        a(f"s_cmp_lt_u32 {sW}, 4\ns_cbranch_scc1 L_notouch")
        touch_at(5)
        a.label("L_notouch")
    mk = R.mark()
    mm = R.get(4); rs = R.get(4); un = R.get(4); key = R.get(4); kp = R.get(2, 2)
    toks = [(vXA, vSA, 0), (vXA+1, vSA+1, 1), (vXB_, vSB_, 2), (vXB_+1, vSB_+1, 3)]
    EARLY = opt.get("early_top", 0)
    def keys_part():
        a(f"v_lshlrev_b32 {v(t0)}, 3, v0\nv_lshlrev_b32 {v(t1)}, 1, v0\nv_sub_u32 {v(t1)}, 0xffff, {v(t1)}")
        for k, (src_, hi) in enumerate(((vSA+2, 0), (vSA+2, 1), (vSB_+2, 0), (vSB_+2, 1))):
            if hi: a(f"v_and_b32 {v(key+k)}, 0xffff0000, {v(src_)}")
            else:  a(f"v_lshlrev_b32 {v(key+k)}, 16, {v(src_)}")
            a(f"v_subrev_u32 {v(t2)}, {(k & 1) + 1024*(k >> 1)}, {v(t1)}\nv_or_b32 {v(key+k)}, {v(key+k)}, {v(t2)}")
        k1, k2 = kp, kp + 1
        a(f"v_max_f32 {v(k1)}, {v(key)}, {v(key+1)}\nv_min_f32 {v(k2)}, {v(key)}, {v(key+1)}\nv_max_f32 {v(t2)}, {v(key+2)}, {v(key+3)}\nv_min_f32 {v(t3)}, {v(key+2)}, {v(key+3)}")
        a(f"v_max_f32 {v(k2)}, {v(k2)}, {v(t3)}\nv_med3_f32 {v(k2)}, {v(k1)}, {v(t2)}, {v(k2)}\nv_max_f32 {v(k1)}, {v(k1)}, {v(t2)}")
        a(f"ds_write_b64 {v(t0)}, {v(kp,2)} offset:{L_KEY}")
        a(f"ds_write_b64 {v(t0)}, {v(vSA,2)} offset:{L_STAT}\nds_write_b64 {v(t0)}, {v(vSB_,2)} offset:{L_STAT + 4096}")
    def top2(kk):
        for j in range(4): a(f"ds_read_b128 {v(kk+4*j,4)}, {v(vL16)} offset:{L_KEY + 1024*j}")
        k1, k2 = kk, kk + 1
        a("s_waitcnt lgkmcnt(2)")
        merge(kk, kk+1, kk+2, kk+3); merge(kk+4, kk+5, kk+6, kk+7)
        a("s_waitcnt lgkmcnt(0)")
        merge(kk+8, kk+9, kk+10, kk+11); merge(kk+12, kk+13, kk+14, kk+15)
        merge(kk, kk+1, kk+4, kk+5); merge(kk+8, kk+9, kk+12, kk+13); merge(kk, kk+1, kk+8, kk+9)
        NEG = "0xff800000"
        da, db = kk + 4, kk + 5
        for ctl in ("row_shr:1 row_mask:0xf", "row_shr:2 row_mask:0xf", "row_shr:4 row_mask:0xf", "row_shr:8 row_mask:0xf", "row_bcast:15 row_mask:0xa", "row_bcast:31 row_mask:0xc"):
            a(f"v_mov_b32 {v(da)}, {NEG}\nv_mov_b32 {v(db)}, {NEG}")
            a(f"v_mov_b32_dpp {v(da)}, {v(k1)} {ctl} bank_mask:0xf\nv_mov_b32_dpp {v(db)}, {v(k2)} {ctl} bank_mask:0xf")
            merge(k1, k2, da, db)
        a(f"v_readlane_b32 s84, {v(k1)}, 63\nv_readlane_b32 s85, {v(k2)}, 63")
        a("s_and_b32 s86, s84, 0xffff\ns_sub_u32 s86, 0xffff, s86\ns_and_b32 s87, s85, 0xffff\ns_sub_u32 s87, 0xffff, s87")
        a(f"s_cmp_eq_u32 {sW}, 4\ns_cselect_b32 s88, s86, s87\ns_lshl_b32 s68, s88, 10\ns_lshl_b32 s69, s88, 2")
        a(f"s_cmp_ge_u32 {sY}, 14\ns_cbranch_scc1 L_norow\nbuffer_load_dwordx4 {v(xsE,4)}, {v(vL16)}, {sX}, s68 offen\nv_mov_b32 {v(t1)}, s69\nds_read_b32 {v(msrE)}, {v(t1)} offset:{L_STAT}")
        a.label("L_norow")
        a(f"s_cmp_lg_u32 {sW}, 4\ns_cbranch_scc1 L_notop")
        a(f"v_mov_b32 {v(tp)}, s86\nv_mov_b32 {v(tp+1)}, s87\nv_mov_b32 {v(tp+2)}, s84\nv_mov_b32 {v(tp+3)}, s85")
        a(f"s_mov_b64 exec, 1\nds_write_b128 {v(vZero)}, {v(tp,4)} offset:{M_TOP}\ns_mov_b64 exec, -1")
        a.label("L_notop")
        arrive(M_CY1)
    if EARLY:
        keys_part()
        arrive(M_CKEY)
        a(f"s_sub_u32 s68, {sW}, 4\ns_cmp_ge_u32 s68, 2\ns_cbranch_scc1 L_p4b")
        a("s_setprio 3")
        spin(M_CKEY, 8)
        mkt = R.mark(); kkE = R.get(16, 2)
        top2(kkE)
        R.release(mkt)
        stamp("m_top")
        a.label("L_p4b")
    for x_, s_, k in toks: a(f"v_and_b32 {v(rs+k)}, 0xffff0000, {v(s_)}\nv_rcp_f32 {v(rs+k)}, {v(rs+k)}\nv_lshlrev_b32 {v(mm+k)}, 16, {v(s_)}")
    for x_, s_, k in toks: a(f"v_lshlrev_b32 {v(vXF+2*k)}, 16, {v(x_)}\nv_and_b32 {v(vXF+2*k+1)}, 0xffff0000, {v(x_)}\nv_mul_f32 {v(mm+k)}, {v(mm+k)}, {v(rs+k)}")
    for x_, s_, k in toks:
        for ch in range(2): a(f"v_fma_f32 {v(vXN+2*k+ch)}, {v(vXF+2*k+ch)}, {v(rs+k)}, -{v(mm+k)}")
    for u_ in range(2):
        for ch in range(2):
            a(f"v_cvt_pk_bf16_f32 {v(un+2*u_+ch)}, {v(vXN+4*u_+ch)}, {v(vXN+4*u_+2+ch)}")
            a(f"ds_write_b32 {v(vUw)}, {v(un+2*u_+ch)} offset:{ch*BLK + u_*2048}")
    if not EARLY and not SC: keys_part()
    R.release(mk)
    R.release(mkP)
    a("s_waitcnt lgkmcnt(0)\ns_barrier")
    stamp("ufill")
    stamp("c_0")
    def epi_prep():
        return [f"v_lshlrev_b32 {v(d1)}, 16, {v(vDsk)}", f"v_and_b32 {v(d1+1)}, 0xffff0000, {v(vDsk)}",
                f"v_add_f32 {v(d1)}, 1.0, {v(d1)}", f"v_add_f32 {v(d1+1)}, 1.0, {v(d1+1)}"] + \
               [f"v_fma_f32 {v(val+k)}, {v(vXN+k)}, {v(d1 + (k & 1))}, {v(vXF+k)}" for k in range(8)] + \
               [f"v_lshlrev_b32 {v(vO)}, 11, v0", f"v_lshlrev_b32 {v(vTk)}, 1, v0", f"v_mov_b32 {v(vBig)}, 0x7ff00000", (f"v_lshlrev_b32 {v(vSelw)}, 3, v0" if C8 else f"v_add_u32 {v(vSelw)}, {L_SEL}, {v(vT16)}")] + ([f"v_add_u32 {v(vSelw)}, {L_STAT}, {v(vSelw)}"] if C8 else [])
    def epi_reads(u_):
        return [f"ds_read_b64 {v(yp + 4*ch + 2*h, 2)}, {v(vYr)} offset:{8192*(2*ch+h) + 4096*u_}" for ch in range(2) for h in range(2)]
    def epi_masks(u_):
        out = []
        for tok in range(2):
            out += [f"v_add_u32 {v(t1)}, {1024*u_ + tok}, {v(vTk)}", f"v_cmp_eq_u32 vcc, s86, {v(t1)}", f"v_cmp_eq_u32 s[78:79], s87, {v(t1)}",
                    "s_or_b64 vcc, vcc, s[78:79]", f"v_cndmask_b32 {v(vOj+tok)}, {v(vO)}, {v(vBig)}, vcc"]
        out += [f"s_lshl_b32 s80, {sCP}, 2"] + ([f"s_add_u32 s80, s80, 0x100000"] if u_ else [])
        return out
    def epi_finish(u_, stores=True):
        out = []
        for tok in range(2):
            for ch in range(2):
                k = 4*u_ + 2*tok + ch
                out += [f"v_add_f32 {v(val+k)}, {v(val+k)}, {v(yp+4*ch+tok)}", f"v_add_f32 {v(val+k)}, {v(val+k)}, {v(yp+4*ch+2+tok)}"]
        for tok in range(2):
            out += [f"v_cvt_pk_bf16_f32 {v(ob+tok)}, {v(val+4*u_+2*tok)}, {v(val+4*u_+2*tok+1)}"]
            if stores: out += [
                    f"buffer_store_dword {v(ob+tok)}, {v(vOj+tok)}, {sOUT}, s80 offen offset:{1024*tok}" + {0: "", 1: " nt", 2: " sc0", 3: " sc1"}[opt.get("onm", 0)]]
        return out
    def epi_sel(u_):
        if C8: return f"ds_write_b64 {v(vSelw)}, {v(ob,2)} offset:{4096*u_}"
        return f"ds_write_b128 {v(vSelw)}, {v(val+4*u_,4)} offset:{8192*u_}"
    def read_top(): return f"ds_read_b128 {v(tp,4)}, {v(vZero)} offset:{M_TOP}"
    def take_top(): return [f"v_readfirstlane_b32 s86, {v(tp)}", f"v_readfirstlane_b32 s87, {v(tp+1)}", f"v_readfirstlane_b32 s84, {v(tp+2)}", f"v_readfirstlane_b32 s85, {v(tp+3)}"]
    a(f"s_cmp_ge_u32 {sW}, 4\ns_cbranch_scc1 L_helper")
    mk = R.mark()
    NA = opt.get("na", 8)
    acc = R.get(32, 4); bufB = [R.get(32, 4), R.get(32, 4)]; bufA = R.get(4*NA, 4)
    ops = []; step = 0
    TWO = opt.get("two", 1)
    NY1 = 6
    stages = ((0, 3), (4, 7)) if TWO else ((0, 7),)
    for lo, hi in stages:
        for ki in range(4):
            for dl in range(hi, -1, -1):
                for i in range(max(0, lo - dl), hi - dl + 1):
                    ops.append((i + dl, ("A", step, dl, ki), ("B", step, i, ki)))
            step += 1
    n1 = sum(1 for o in ops if o[1][1] < 4) if TWO else len(ops)
    first = {}; last = {}
    for t_, (_, ka, kb) in enumerate(ops):
        for k_ in (ka, kb):
            first.setdefault(k_, t_); last[k_] = t_
    order = sorted(first, key=lambda k_: (first[k_], k_[0] == "B"))
    reg = {}; prev = {}; na = 0; occA = [None]*NA; occB = {}
    for k_ in order:
        if k_[0] == "A":
            slot = na % NA; na += 1
            reg[k_] = bufA + 4*slot; prev[k_] = occA[slot]; occA[slot] = k_
        else:
            key_ = (k_[1] & 1, k_[2])
            reg[k_] = bufB[k_[1] & 1] + 4*k_[2]; prev[k_] = occB.get(key_); occB[key_] = k_
    queue = []; nxt = 0; waited = [-1]; touched = set()
    def lds(text, key=None):
        if len(queue) - 1 - waited[0] >= 15:
            a("s_waitcnt lgkmcnt(12)"); waited[0] = len(queue) - 1 - 12
        a(text); queue.append(key)
    def need(keys):
        pos = max(i for i, q_ in enumerate(queue) if q_ in keys)
        if pos > waited[0]:
            a(f"s_waitcnt lgkmcnt({min(15, len(queue) - 1 - pos)})"); waited[0] = pos
    def issue(k_):
        if k_[0] == "A":
            off = 512*(7-k_[2]) + 64*(3-k_[3])
            if C8: lds(f"ds_read_b128 {v(reg[k_],4)}, {v(vA)} offset:{off}", k_)
            else:
                lds(f"ds_read_b64 {v(reg[k_],2)}, {v(vA)} offset:{off}", None)
                lds(f"ds_read_b64 {v(reg[k_]+2,2)}, {v(vA)} offset:{off+8}", k_)
        else:
            lds(f"ds_read_b128 {v(reg[k_],4)}, {v(vB)} offset:{512*k_[2] + 64*(3-k_[3])}", k_)
    extras = {}
    HO = False
    def at(t_, *acts):
        extras.setdefault(t_, []).extend(acts)
    if TWO:
        t = n1 + 5
        for i in range(4): at(t + i, ("lds", f"ds_write_b128 {v(vYw)}, {v(acc+4*i,4)} offset:{1024*i}", ("yw", i)))
        at(t + 4, ("ins", "s_mov_b64 exec, 1"), ("lds", f"ds_add_u32 {v(vZero)}, {v(vOne)} offset:{M_CY1}", "arr1"), ("ins", "s_mov_b64 exec, -1"))
        prep = epi_prep()
        tt = t + 5
        for k in range(0, len(prep), 2):
            at(tt, *[("ins", x) for x in prep[k:k+2]]); tt += 1
        tf = tt + opt.get("tf", 8)
        at(tf, ("lds", f"ds_read_b32 {v(t3)}, {v(vZero)} offset:{M_CY1}", "flag"))
        at(tf + 6, ("need", ["flag"]), ("ins", f"v_readfirstlane_b32 s68, {v(t3)}\ns_cmp_ge_u32 s68, {NY1}\ns_cbranch_scc0 L_slowA"), ("label", "L_backA"))
        HO = opt.get("ho", 0) and C8
        at(tf + 6, ("lds", read_top(), "top"))
        for k, x in enumerate(epi_reads(0)): at(tf + 7 + k, ("lds", x, ("yp", k)))
        at(tf + 13, ("need", ["top"]), *[("ins", x) for x in take_top()[:2]])
        at(tf + 14, *[("ins", x) for x in take_top()[2:]])
        tt = tf + 16
        if not HO:
            msk = epi_masks(0)
            for k in range(0, len(msk), 2):
                at(tt, *[("ins", x) for x in msk[k:k+2]]); tt += 1
        at(tt, ("need", [("yp", 3)]))
        fin = epi_finish(0, stores=not HO)
        for k in range(0, len(fin), 2):
            at(tt, *[("ins", x) for x in fin[k:k+2]]); tt += 1
        at(tt, ("lds", epi_sel(0), "sel"))
        at(tt + 1, ("ins", "s_mov_b64 exec, 1"), ("lds", f"ds_add_u32 {v(vZero)}, {v(vOne)} offset:{M_CS}", "arr2"))
        if HO: at(tt + 1, ("lds", f"ds_add_u32 {v(vZero)}, {v(vOne)} offset:{M_CSA}", "arr3"))
        at(tt + 1, ("ins", "s_mov_b64 exec, -1"))
        assert tt + 1 < len(ops) - 2
    if opt.get("noextra", 0): extras = {60: [("label", "L_backA")]}
    LOOK = opt.get("look", 20)
    for t_, (j, ka, kb) in enumerate(ops):
        for act in extras.get(t_, []):
            if act[0] == "lds": lds(act[1], act[2])
            elif act[0] == "need": need(act[1])
            elif act[0] == "label": a.label(act[1])
            else: a(act[1])
        budget = 10 if t_ == 0 else opt.get('budget', 2)
        while nxt < len(order):
            k_ = order[nxt]
            cost = 2 if (k_[0] == "A" and not C8) else 1
            must = first[k_] <= t_
            free = prev[k_] is None or last[prev[k_]] < t_
            if must or (free and budget >= cost and first[k_] <= t_ + LOOK and len(queue) - 1 - waited[0] + cost <= 13):
                assert free
                issue(k_); nxt += 1; budget -= cost
            else: break
        WG_ = opt.get("wg", 1)
        pos_need = max(i for i, q_ in enumerate(queue) if q_ in (ka, kb))
        if pos_need > waited[0]:
            ks = [ka, kb]
            for t2_ in range(t_ + 1, min(len(ops), t_ + WG_)):
                ks += [k_ for k_ in (ops[t2_][1], ops[t2_][2]) if k_ in queue and first[k_] - (t_) <= WG_ and queue.index(k_) <= len(queue) - 1 - opt.get("wmin", 3)]
            need(ks)
        cin = v(acc+4*j,4) if j in touched else "0"
        touched.add(j)
        a(f"v_mfma_f32_16x16x32_bf16 {v(acc+4*j,4)}, {v(reg[ka],4)}, {v(reg[kb],4)}, {cin}")
    stamp("c_1")
    stamp("conv")
    if C8 or WDY:
        a(f"s_cmp_ge_u32 {sY}, 14\ns_cbranch_scc1 L_nocw")
        spin(M_CW2, 4)
        a.label("L_nocw")
    for i in range(4 if TWO else 0, 8): a(f"ds_write_b128 {v(vYw)}, {v(acc+4*i,4)} offset:{1024*i}")
    arrive(M_CY2)
    if not TWO: arrive(M_CY1)
    R.release(mk)
    a("s_branch L_epiB" if TWO else "s_branch L_epiA")
    if TWO:
        a.label("L_slowA")
        spin(M_CY1, NY1)
        a("s_branch L_backA")
    a.label("L_helper")
    EA = opt.get("ea", 1) and TWO and not WDL and DM != 2
    NSA = 4 if (TWO and HO) else 2
    if opt.get("prio", 1): a("s_setprio 3")
    mk = R.mark()
    wp = R.get(16); vWD = R.get(16, 2)
    def wd_reads():
        YS = C8 or WDY
        a(f"v_add_u32 {v(t0)}, {L_YP + 4096 if YS else L_WD}, {v(vH4)}")
        for i in range(16):
            a(f"ds_read_b32 {v(vWD+i)}, {v(t0)} offset:{8192*(i >> 2) + 1024*(i & 3) if YS else 1024*i}")
            if i == 7: a("s_waitcnt lgkmcnt(4)")
        a("s_mov_b32 s78, 0x05040100\ns_mov_b32 s79, 0x07060302\ns_waitcnt lgkmcnt(0)")
        for p in range(8):
            a(f"v_perm_b32 {v(wp+2*p)}, {v(vWD+2*p+1)}, {v(vWD+2*p)}, s78\nv_perm_b32 {v(wp+2*p+1)}, {v(vWD+2*p+1)}, {v(vWD+2*p)}, s79")
        if YS: arrive(M_CW2)
    a(f"s_cmp_ge_u32 {sW}, 6\ns_cbranch_scc1 L_h67")
    if not EARLY and not SC:
        kk = R.get(16, 2)
        top2(kk)
        stamp("m_top")
    xs = xsE; msr = msrE; xf8 = R.get(8)
    a(f"s_cmp_ge_u32 {sY}, 14\ns_cbranch_scc1 L_epiA")
    if WDL or DM == 2:
        if DM == 2: wd_reads()
        a("s_waitcnt vmcnt(0) lgkmcnt(0)")
        if SC: a(f"s_bitcmp1_b32 s88, 0\ns_cselect_b64 vcc, -1, 0\nv_cndmask_b32 {v(msr)}, {v(msr)}, {v(msr+1)}, vcc")
    else:
        wd_reads()
        if EA:
            a("s_mov_b32 s3, 1\ns_branch L_epiA0")
            a.label("L_ret45")
            a(f"s_waitcnt vmcnt({NSA})")
        else:
            a(f"s_waitcnt vmcnt(0)")
        if SC: a(f"s_bitcmp1_b32 s88, 0\ns_cselect_b64 vcc, -1, 0\nv_cndmask_b32 {v(msr)}, {v(msr)}, {v(msr+1)}, vcc")
    stamp("m_row")
    a(f"v_and_b32 {v(t1)}, 0xffff0000, {v(msr)}\nv_rcp_f32 {v(t1)}, {v(t1)}\nv_lshlrev_b32 {v(t0)}, 16, {v(msr)}")
    for k in range(4): a(f"v_lshlrev_b32 {v(xf8+2*k)}, 16, {v(xs+k)}\nv_and_b32 {v(xf8+2*k+1)}, 0xffff0000, {v(xs+k)}")
    a(f"v_mul_f32 {v(t0)}, {v(t0)}, {v(t1)}")
    for k in range(8): a(f"v_fma_f32 {v(xf8+k)}, {v(xf8+k)}, {v(t1)}, -{v(t0)}")
    for k in range(4): a(f"v_cvt_pk_bf16_f32 {v(xs+k)}, {v(xf8+2*k)}, {v(xf8+2*k+1)}")
    a(f"s_lshl_b32 s68, {sHW}, 10\ns_add_u32 s68, s68, {L_XS}\nv_add_u32 {v(t0)}, s68, {v(vL16)}\nds_write_b128 {v(t0)}, {v(xs,4)}")
    arrive(M_C1)
    if WDL: wd_dma()
    a("s_branch L_gemv")
    a.label("L_h67")
    a(f"s_cmp_ge_u32 {sY}, 14\ns_cbranch_scc1 L_epiA")
    if DM != 2:
        if not GE: mat_dma(sWG, L_MW, "g1")
        if GE != 2: mat_dma(sWU, L_MW + 16384, "u1")
    stamp("m_iss")
    if not WDL: wd_reads()
    if LATE:
        if EA:
            a("s_mov_b32 s3, 2\ns_branch L_epiA0")
            a.label("L_ret67")
        a(f"s_waitcnt vmcnt({NSA})" if EA else "s_waitcnt vmcnt(0)")
        stamp("m_dma")
        arrive(M_CWT if opt.get("sep", 1) else M_C1)
    a.label("L_gemv")
    vXSr = R.get(); vTR = R.get()
    a(f"v_and_b32 {v(t0)}, 1, {v(vM)}\nv_lshlrev_b32 {v(t0)}, 10, {v(t0)}\nv_lshl_add_u32 {v(t0)}, {v(vQ)}, 3, {v(t0)}\ns_lshl_b32 s69, {sHW}, 8\ns_add_u32 s69, s69, {L_XS}\nv_add_u32 {v(vXSr)}, s69, {v(t0)}")
    a(f"s_lshl_b32 s69, {sHW}, 12\ns_add_u32 s69, s69, {L_MW}\nv_lshl_add_u32 {v(vTR)}, {v(lane)}, 3, s69")
    fbg = R.get(16, 2); fbu = R.get(16, 2); fa_ = R.get(16, 2); aG = R.get(4, 4); aU = R.get(4, 4)
    def tr_reads():
        for s_ in range(4):
            for h in range(2): a(f"ds_read_b64_tr_b16 {v(fbg+4*s_+2*h,2)}, {v(vTR)} offset:{1024*s_ + 512*h}")
        a("s_waitcnt lgkmcnt(4)")
        for s_ in range(4):
            for h in range(2): a(f"ds_read_b64_tr_b16 {v(fbu+4*s_+2*h,2)}, {v(vTR)} offset:{16384 + 1024*s_ + 512*h}")
    if opt.get("sep", 1):
        spin(M_CWT, 2)
        tr_reads()
        spin(M_C1, 2)
        stamp("m_ld")
    else:
        spin(M_C1, 4 if LATE else 2, opt.get("bk2", 0))
        stamp("m_ld")
        tr_reads()
        a("s_waitcnt lgkmcnt(6)")
    for s_ in range(4):
        for h in range(2): a(f"ds_read_b64 {v(fa_+4*s_+2*h,2)}, {v(vXSr)} offset:{64*s_ + 32*h}")
    for s_ in range(4):
        a(f"s_waitcnt lgkmcnt({6 - 2*s_})\nv_mfma_f32_16x16x32_bf16 {v(aG,4)}, {v(fa_+4*s_,4)}, {v(fbg+4*s_,4)}, {'0' if s_ == 0 else v(aG,4)}")
        a(f"v_mfma_f32_16x16x32_bf16 {v(aU,4)}, {v(fa_+4*s_,4)}, {v(fbu+4*s_,4)}, {'0' if s_ == 0 else v(aU,4)}")
    pa = R.get(8, 2)
    a(f"s_lshl_b32 s69, {sHW}, 8\ns_add_u32 s69, s69, {L_PART}\nv_lshl_add_u32 {v(t2)}, {v(lane)}, 2, s69")
    for k in (0, 1, 2, 4, 5, 6): a(f"v_mov_b32 {v(pa+k)}, 0")
    a(f"v_mov_b32 {v(pa+3)}, {sNON}\nv_mov_b32 {v(pa+7)}, {sNON}")
    a(f"v_cmp_eq_u32 vcc, 0, {v(vQ)}\nv_cndmask_b32 {v(t0)}, {v(aG+1)}, {v(aG)}, vcc")
    a(f"v_cmp_eq_u32 vcc, 2, {v(vQ)}\nv_cndmask_b32 {v(t1)}, {v(aU+1)}, {v(aU)}, vcc")
    a(f"v_cmp_gt_u32 vcc, 2, {v(vQ)}\nv_cndmask_b32 {v(t0)}, {v(t1)}, {v(t0)}, vcc")
    a(f"ds_write_b32 {v(t2)}, {v(t0)}")
    arrive(M_CNT)
    if WDL:
        a(f"s_cmp_ge_u32 {sW}, 6\ns_cbranch_scc1 L_wdw\ns_waitcnt vmcnt(0)")
        arrive(M_CW)
        a.label("L_wdw")
        spin(M_CW, 2)
        wd_reads()
    pr = R.get(4)
    a(f"v_lshlrev_b32 {v(t1)}, 2, {v(lane)}\nv_add_u32 {v(t1)}, {L_PART}, {v(t1)}")
    spin(M_CNT, 4)
    stamp("m_spin")
    for j in range(4): a(f"ds_read_b32 {v(pr+j)}, {v(t1)} offset:{256*j}")
    a(f"s_waitcnt lgkmcnt(0)\nv_add_f32 {v(pr)}, {v(pr)}, {v(pr+1)}\nv_add_f32 {v(pr+2)}, {v(pr+2)}, {v(pr+3)}\nv_add_f32 {v(pr)}, {v(pr)}, {v(pr+2)}")
    a(f"v_cvt_pk_bf16_f32 {v(pr)}, {v(pr)}, {v(pr)}\nv_and_b32 {v(pr)}, 0xffff0000, {v(pr)}\nv_mov_b32 {v(pr+1)}, {v(pr)}")
    a(f"v_permlane32_swap_b32 {v(pr)}, {v(pr+1)}")
    a(f"v_mul_f32 {v(t0)}, 0xbfb8aa3b, {v(pr)}\nv_exp_f32 {v(t0)}, {v(t0)}\nv_add_f32 {v(t0)}, 1.0, {v(t0)}\nv_rcp_f32 {v(t0)}, {v(t0)}\nv_mul_f32 {v(t0)}, {v(t0)}, {v(pr)}")
    a(f"v_cvt_pk_bf16_f32 {v(t0)}, {v(t0)}, {v(t0)}\nv_and_b32 {v(t0)}, 0xffff0000, {v(t0)}\nv_mul_f32 {v(t0)}, {v(t0)}, {v(pr+1)}\nv_cvt_pk_bf16_f32 {v(t0)}, {v(t0)}, {v(t0)}\nv_and_b32 {v(t0)}, 0xffff, {v(t0)}")
    a(f"v_mov_b32_dpp {v(t1)}, {v(t0)} quad_perm:[1,0,3,2] row_mask:0xf bank_mask:0xf bound_ctrl:0\nv_lshl_or_b32 {v(t0)}, {v(t1)}, 16, {v(t0)}")
    stamp("m_h")
    for p in range(8):
        for tok in range(2): a(f"v_readlane_b32 s{80 + 2*p + tok}, {v(t0)}, {16*tok + 2*p}")
    for p in range(8):
        for tok in range(2):
            for ch in range(2):
                dst = pa + (0, 1, 2, 4)[2*tok + ch]
                a(f"v_dot2_f32_bf16 {v(dst)}, s{80 + 2*p + tok}, {v(wp+2*p+ch)}, {v(dst)}")
    a(f"v_lshlrev_b32 {v(t1)}, 3, {v(vH4)}\ns_lshl_b32 s68, {sSL}, 13\ns_add_u32 s68, s68, {WS_PB}\ns_nop 1")
    a(f"buffer_store_dwordx4 {v(pa,4)}, {v(t1)}, {sWS}, s68 offen sc1\nbuffer_store_dwordx4 {v(pa+4,4)}, {v(t1)}, {sWS}, s68 offen offset:16 sc1")
    R.release(mk)
    stamp("moe")
    if EA:
        if opt.get("prio", 1): a("s_setprio 0")
        a(read_top()); a("s_waitcnt lgkmcnt(0)")
        for x in take_top(): a(x)
        a("s_branch L_epiB")
    a.label("L_epiA")
    if opt.get("prio", 1): a("s_setprio 0")
    a("s_mov_b32 s3, 0")
    a.label("L_epiA0")
    for x in epi_prep(): a(x)
    spin(M_CY1, NY1, opt.get("bk", 0))
    a(read_top())
    for x in epi_reads(0): a(x)
    a("s_waitcnt lgkmcnt(4)")
    for x in take_top() + epi_masks(0): a(x)
    a("s_waitcnt lgkmcnt(0)")
    for x in epi_finish(0): a(x)
    a(epi_sel(0))
    arrive(M_CS)
    if TWO and HO:
        a(f"v_subrev_u32 {v(yp)}, 512, {v(vTk)}\nv_subrev_u32 {v(yp+1)}, 0x80000, {v(vO)}\nv_subrev_u32 {v(yp+2)}, 2048, {v(vSelw)}")
        for tok in range(2):
            a(f"v_add_u32 {v(t1)}, {tok}, {v(yp)}\nv_cmp_eq_u32 vcc, s86, {v(t1)}\nv_cmp_eq_u32 s[78:79], s87, {v(t1)}\ns_or_b64 vcc, vcc, s[78:79]\nv_cndmask_b32 {v(vOj+tok)}, {v(yp+1)}, {v(vBig)}, vcc")
        spin(M_CSA, 4, opt.get("bk", 0))
        a(f"ds_read_b64 {v(yp+4,2)}, {v(yp+2)}\ns_lshl_b32 s80, {sCP}, 2\ns_waitcnt lgkmcnt(0)")
        for tok in range(2): a(f"buffer_store_dword {v(yp+4+tok)}, {v(vOj+tok)}, {sOUT}, s80 offen offset:{1024*tok}")
    stamp("epiA")
    if EA: a("s_cmp_eq_u32 s3, 1\ns_cbranch_scc1 L_ret45\ns_cmp_eq_u32 s3, 2\ns_cbranch_scc1 L_ret67")
    a.label("L_epiB")
    spin(M_CY2, 4, opt.get("bk", 0))
    stamp("ybar")
    for x in epi_reads(1): a(x)
    for x in epi_masks(1): a(x)
    a("s_waitcnt lgkmcnt(0)")
    for x in epi_finish(1): a(x)
    a(epi_sel(1))
    arrive(M_CS)
    stamp("epi")
    a(f"s_cmp_lg_u32 {sW}, 4\ns_cbranch_scc1 L_fin")
    mk = R.mark()
    pl = R.get(16, 2); vP0 = R.get(); vP1 = R.get(); sm = R.get(4); sel = R.get(2, 2); tsel = R.get()
    a(f"v_lshlrev_b32 {v(vP0)}, 13, {v(lane)}\nv_add_u32 {v(vP1)}, 0x80000, {v(vP0)}\nv_cmp_gt_u32 vcc, {NPROD - 64}, {v(lane)}\nv_cndmask_b32 {v(vP1)}, {v(vBig)}, {v(vP1)}, vcc")
    a(f"s_mov_b64 s[90:91], vcc\ns_lshl_b32 s92, {sCP}, 5\ns_add_u32 s92, s92, {WS_PB}\ns_mov_b32 s93, 0")
    def ploads():
        a(f"buffer_load_dwordx4 {v(pl,4)}, {v(vP0)}, {sWS}, s92 offen sc1\nbuffer_load_dwordx4 {v(pl+4,4)}, {v(vP0)}, {sWS}, s92 offen offset:16 sc1")
        a(f"buffer_load_dwordx4 {v(pl+8,4)}, {v(vP1)}, {sWS}, s92 offen sc1\nbuffer_load_dwordx4 {v(pl+12,4)}, {v(vP1)}, {sWS}, s92 offen offset:16 sc1")
    if opt.get("pwait", 0): a("s_waitcnt vmcnt(0)")
    NREP = opt.get("rep", 4)
    if NREP:
        a(f"v_mul_u32_u24 {v(sel)}, {NPROD // NREP}, {v(lane)}\ns_mul_i32 s94, {sCP}, 5\ns_and_b32 s94, s94, 15\nv_add_u32 {v(sel)}, s94, {v(sel)}\nv_lshlrev_b32 {v(sel)}, 13, {v(sel)}\ns_mov_b64 exec, {(1 << NREP) - 1}")
        a.label("L_rpoll")
        a(f"buffer_load_dword {v(sel+1)}, {v(sel)}, {sWS}, s92 offen offset:28 sc1\ns_waitcnt vmcnt(0)\nv_cmp_ne_u32 vcc, {sNON}, {v(sel+1)}")
        a("s_cbranch_vccz L_rok\ns_add_u32 s93, s93, 1\ns_cmp_lt_u32 s93, 100000\ns_cbranch_scc1 L_rpoll")
        a.label("L_rok")
        a("s_mov_b64 exec, -1\ns_mov_b32 s93, 0")
    ploads()
    a(f"v_cmp_eq_u32 vcc, 0, {v(lane)}\nv_mov_b32 {v(t1)}, s87\nv_mov_b32 {v(t2)}, s86\nv_cndmask_b32 {v(t1)}, {v(t1)}, {v(t2)}, vcc")
    a(f"v_mov_b32 {v(t2)}, s85\nv_mov_b32 {v(t3)}, s84\nv_cndmask_b32 {v(t2)}, {v(t2)}, {v(t3)}, vcc")
    a(f"v_lshlrev_b32 {v(tsel)}, {2 if C8 else 3}, {v(t1)}")
    spin(M_CS, 16)
    if C8: a(f"ds_read_b32 {v(sel)}, {v(tsel)} offset:{L_STAT}")
    else: a(f"ds_read_b64 {v(sel,2)}, {v(tsel)} offset:{L_SEL}")
    a(f"v_and_b32 {v(t2)}, 0xffff0000, {v(t2)}\nv_mul_f32 {v(t2)}, 0xbfb8aa3b, {v(t2)}\nv_exp_f32 {v(t2)}, {v(t2)}\nv_add_f32 {v(t2)}, 1.0, {v(t2)}\nv_rcp_f32 {v(t2)}, {v(t2)}")
    a(f"v_cvt_pk_bf16_f32 {v(t2)}, {v(t2)}, {v(t2)}\nv_and_b32 {v(t2)}, 0xffff0000, {v(t2)}\nv_lshlrev_b32 {v(t1)}, 10, {v(t1)}")
    a.label("L_ppoll")
    a("s_waitcnt vmcnt(0)")
    a(f"v_cmp_ne_u32 vcc, {sNON}, {v(pl+11)}\nv_cmp_ne_u32 s[78:79], {sNON}, {v(pl+15)}\nv_cmp_ne_u32 s[80:81], {sNON}, {v(pl+3)}\nv_cmp_ne_u32 s[82:83], {sNON}, {v(pl+7)}")
    a("s_or_b64 vcc, vcc, s[78:79]\ns_and_b64 vcc, vcc, s[90:91]\ns_or_b64 s[80:81], s[80:81], s[82:83]\ns_or_b64 vcc, vcc, s[80:81]")
    a("s_cbranch_vccz L_pok\ns_add_u32 s93, s93, 1\ns_cmp_ge_u32 s93, 100000\ns_cbranch_scc1 L_pok")
    ploads()
    a("s_branch L_ppoll")
    a.label("L_pok")
    for k, (x0, x1) in enumerate(((pl, pl+8), (pl+1, pl+9), (pl+2, pl+10), (pl+4, pl+12))):
        a(f"v_add_f32 {v(sm+k)}, {v(x0)}, {v(x1)}")
    wave_reduce([sm, sm+1, sm+2, sm+3])
    a(f"v_readlane_b32 s92, {v(sm)}, 63\nv_readlane_b32 s93, {v(sm+1)}, 63\nv_readlane_b32 s94, {v(sm+2)}, 63\nv_readlane_b32 s95, {v(sm+3)}, 63")
    a(f"v_cmp_eq_u32 vcc, 0, {v(lane)}\nv_mov_b32 {v(sm)}, s94\nv_mov_b32 {v(sm+1)}, s95\nv_mov_b32 {v(sm+2)}, s92\nv_mov_b32 {v(sm+3)}, s93")
    a(f"v_cndmask_b32 {v(sm)}, {v(sm)}, {v(sm+2)}, vcc\nv_cndmask_b32 {v(sm+1)}, {v(sm+1)}, {v(sm+3)}, vcc")
    a(f"v_cvt_pk_bf16_f32 {v(sm)}, {v(sm)}, {v(sm+1)}\nv_and_b32 {v(sm+1)}, 0xffff0000, {v(sm)}\nv_lshlrev_b32 {v(sm)}, 16, {v(sm)}\ns_waitcnt lgkmcnt(0)")
    if C8: a(f"v_and_b32 {v(sel+1)}, 0xffff0000, {v(sel)}\nv_lshlrev_b32 {v(sel)}, 16, {v(sel)}")
    a(f"v_fma_f32 {v(sm)}, {v(sm)}, {v(t2)}, {v(sel)}\nv_fma_f32 {v(sm+1)}, {v(sm+1)}, {v(t2)}, {v(sel+1)}")
    a(f"v_cvt_pk_bf16_f32 {v(sm)}, {v(sm)}, {v(sm+1)}\ns_lshl_b32 s68, {sCP}, 2")
    a(f"s_mov_b64 exec, 3\nbuffer_store_dword {v(sm)}, {v(t1)}, {sOUT}, s68 offen\ns_mov_b64 exec, -1")
    R.release(mk)
    a(f"s_cmp_lg_u32 s2, 0\ns_cbranch_scc1 L_fin\ns_mov_b64 exec, 1\nbuffer_store_dword {v(vZero)}, {v(vZero)}, {sDBG}, 0 offen sc1\ns_mov_b64 exec, -1")
    a.label("L_fin")
    stamp("fin")
    if debug_dump:
        a("s_waitcnt lgkmcnt(0)\ns_barrier")
        a(f"s_mul_i32 s68, s2, {LDS_BYTES}\ns_add_u32 s68, s68, {WS_DUMP}\nv_lshlrev_b32 {v(t0)}, 2, v0\ns_mov_b32 s69, 0")
        a.label("L_dump")
        a(f"ds_read_b32 {v(t1)}, {v(t0)}\ns_waitcnt lgkmcnt(0)\nbuffer_store_dword {v(t1)}, {v(t0)}, {sWS}, s68 offen")
        a(f"v_add_u32 {v(t0)}, 2048, {v(t0)}\ns_add_u32 s69, s69, 2048\ns_cmp_lt_u32 s69, {LDS_BYTES}\ns_cbranch_scc1 L_dump")
    if stamps:
        a("s_waitcnt vmcnt(0)")
        stamp("end")
        a(f"s_lshl_b32 s68, s2, 3\ns_add_u32 s68, s68, {sW}\ns_lshl_b32 s68, s68, 8\ns_add_u32 s68, s68, {WS_STAMP}")
        a(f"v_lshlrev_b32 {v(t0)}, 2, {v(lane)}\nbuffer_store_dword {v(vST)}, {v(t0)}, {sWS}, s68 offen")
    a.label("L_end")
    a("s_endpgm")
    body = a.finalize()
    tab = ".p2align 7\n.type L_tab_idx,@object\nL_tab_idx:\n"
    it = idx_table()
    w = np.concatenate([it, (it.astype(np.int64) + BLK).astype(np.uint16)]).view(np.uint32)
    for i in range(0, len(w), 8): tab += "  .long " + ",".join(f"{x:#x}" for x in w[i:i+8]) + "\n"
    tab += ".size L_tab_idx, .-L_tab_idx\nL_tab_end:\n"
    nv = (R.hi + 7) // 8 * 8
    text = f"""; Fused LayerNorm + S4D convolution + top-2 MoE residual (one persistent workgroup per CU).
; @launch grid=(256,1,1) block=(512,1,1) lds={LDS_BYTES}
.amdgcn_target "amdgcn-amd-amdhsa--gfx950"
.text
.globl {KNAME}
.p2align 8
.type {KNAME},@function
{KNAME}:
{body}{tab}.section .rodata,"a"
.p2align 6
.amdhsa_kernel {KNAME}
  .amdhsa_next_free_vgpr {nv}
  .amdhsa_next_free_sgpr 102
  .amdhsa_accum_offset {nv}
  .amdhsa_group_segment_fixed_size 0
  .amdhsa_kernarg_size 120
  .amdhsa_user_sgpr_count 2
  .amdhsa_user_sgpr_kernarg_segment_ptr 1
  .amdhsa_system_sgpr_workgroup_id_x 1
  .amdhsa_float_denorm_mode_32 3
.end_amdhsa_kernel
"""
    return text, stamp_slots, R.hi

if __name__ == "__main__":
    import argparse
    p = argparse.ArgumentParser()
    p.add_argument("-o", default="k.s"); p.add_argument("--dump", action="store_true"); p.add_argument("--stamps", default="")
    p.add_argument("--opt", default="")
    args = p.parse_args()
    opt = {kv.split("=")[0]: int(kv.split("=")[1]) for kv in args.opt.split(",") if kv}
    text, slots, hi = gen(debug_dump=args.dump, stamps=(True if args.stamps == 'all' else [x for x in args.stamps.split(',') if x]), opt=opt)
    open(args.o, "w").write(text)
    print("vgprs", hi, "stamps", ",".join(slots), "lines", text.count("\n"))
```
